```python
import torch

def _softmax(x, axis=-1):
    return torch.softmax(x, dim=axis)
def _gelu(x):
    return torch.nn.functional.gelu(x, approximate="tanh")
def _silu(x):
    return torch.nn.functional.silu(x)
def _sigmoid(x):
    return torch.sigmoid(x)
def _layernorm(x, axis=-1, eps=1e-5):
    m = x.mean(dim=axis, keepdim=True)
    v = x.var(dim=axis, keepdim=True, unbiased=False)
    return (x - m) / torch.sqrt(v + eps)
def _scatter_add(tgt, idx, src, axis=0):
    return tgt.clone().index_add_(axis, idx, src)
def _segment_sum(src, seg, n):
    out = torch.zeros((n,) + src.shape[1:], dtype=src.dtype)
    return out.index_add_(0, seg, src)
def _pad(x, pw):
    flat = tuple(v for pair in reversed(pw) for v in pair)
    return torch.nn.functional.pad(x, flat)

kernel_name = 'gated_mix__compressed_kv_cla__grouped_kv_mqa__prompt'

def setup_inputs():

    _w = (lambda a: (lambda t: t.to(torch.bfloat16) if t.is_floating_point() else t)(torch.as_tensor(a)))
    def _A_setup():
        B, H, Sq, Sk, D, M = 1, 32, 2048, 2048, 128, 512
        Dc = 4 * D
        return {
            "x": _w((lambda *s: torch.randn(*s, dtype=torch.bfloat16) * 0.05)(B, Sq, M)),
            "c_kv": _w((lambda *s: torch.randn(*s, dtype=torch.bfloat16) * 0.8)(B, Sk, Dc)),
            "w_q": _w((lambda *s: torch.randn(*s, dtype=torch.bfloat16) * 6.4)(M, H, D) * (M ** -0.5)),
            "w_uk": _w((lambda *s: torch.randn(*s, dtype=torch.bfloat16) * 6.4)(Dc, H, D) * (Dc ** -0.5)),
            "w_uv": _w((lambda *s: torch.randn(*s, dtype=torch.bfloat16) * 0.8)(Dc, H, D) * (Dc ** -0.5)),
            "w_o": _w((lambda *s: torch.randn(*s, dtype=torch.bfloat16) * 0.8)(H, D, M) * ((H * D) ** -0.5)),
        }
    _A_in = _A_setup()

    def _B_setup():
        B, S, D, H = 1, 2048, 512, 32
        Dh = D // H
        return {
            "x": _w((lambda *s: torch.randn(*s, dtype=torch.bfloat16) * 0.05)(B, S, D)),
            "wq": _w((lambda *s: torch.randn(*s, dtype=torch.bfloat16) * 3.2)(D, H * Dh)),
            "wk": _w((lambda *s: torch.randn(*s, dtype=torch.bfloat16) * 3.2)(D, Dh)),
            "wv": _w((lambda *s: torch.randn(*s, dtype=torch.bfloat16) * 0.1)(D, Dh)),
            "wo": _w((lambda *s: torch.randn(*s, dtype=torch.bfloat16) * 0.1)(H * Dh, D)),
        }
    _B_in = _B_setup()

    return {
        "A_x": _A_in["x"],
        "A_c_kv": _A_in["c_kv"],
        "A_w_q": _A_in["w_q"],
        "A_w_uk": _A_in["w_uk"],
        "A_w_uv": _A_in["w_uv"],
        "A_w_o": _A_in["w_o"],
        "B_x": _B_in["x"],
        "B_wq": _B_in["wq"],
        "B_wk": _B_in["wk"],
        "B_wv": _B_in["wv"],
        "B_wo": _B_in["wo"],
        "gate_w": _w((lambda *s: torch.randn(*s, dtype=torch.bfloat16) * 0.05)(512) * 16.0),
    }

def reference(A_x, A_c_kv, A_w_q, A_w_uk, A_w_uv, A_w_o, B_x, B_wq, B_wk, B_wv, B_wo, gate_w):
    def _A_ref(x, c_kv, w_q, w_uk, w_uv, w_o):
        B, Sq, M = x.shape[0], x.shape[1], x.shape[2]
        Sk = c_kv.shape[1]
        H, D = w_q.shape[1], w_q.shape[2]
        q = torch.einsum("bqm,mhd->bhqd", x, w_q)
        k = torch.einsum("bkc,chd->bhkd", c_kv, w_uk)
        v = torch.einsum("bkc,chd->bhkd", c_kv, w_uv)
        scores = torch.einsum("bhqd,bhkd->bhqk", q, k) * (D ** -0.5)
        off = Sk - Sq
        qi = torch.arange(Sq)[:, None]
        kj = torch.arange(Sk)[None, :]
        cmask = kj <= (qi + off)
        scores = torch.where(cmask[None, None], scores, -1e9)
        p = _softmax(scores, axis=-1)
        ctx = torch.einsum("bhqk,bhkd->bhqd", p, v)
        return torch.einsum("bhqd,hdm->bqm", ctx, w_o)

    def _B_ref(x, wq, wk, wv, wo):
        B, S, D = x.shape
        H = 32
        Dh = D // H
        q = (lambda x, *d: x.permute(*d))((x @ wq).reshape(B, S, H, Dh), 0, 2, 1, 3)
        k = x @ wk
        v = x @ wv
        scores = torch.einsum("bhqd,bkd->bhqk", q, k) * (Dh ** -0.5)
        p = _softmax(scores, axis=-1)
        o = torch.einsum("bhqk,bkd->bhqd", p, v)
        return (lambda x, *d: x.permute(*d))(o, 0, 2, 1, 3).reshape(B, S, H * Dh) @ wo

    x = A_x
    g = _sigmoid((x * gate_w).sum(-1, keepdims=True))
    a = _A_ref(x, A_c_kv, A_w_q, A_w_uk, A_w_uv, A_w_o)
    b = _B_ref(x, B_wq, B_wk, B_wv, B_wo)
    return g * a + (1 - g) * b
```

```python
class Reg:
    def __init__(self, f, base, n):
        self.f, self.base, self.n = f, base, n

    def __getitem__(self, i):
        if isinstance(i, slice):
            a = 0 if i.start is None else i.start
            b = self.n if i.stop is None else i.stop
            assert 0 <= a < b <= self.n, (a, b, self.n)
            return Reg(self.f, self.base + a, b - a)
        assert 0 <= i < self.n, (i, self.n)
        return Reg(self.f, self.base + i, 1)

    def __str__(self):
        if self.n == 1:
            return f"{self.f}{self.base}"
        return f"{self.f}[{self.base}:{self.base + self.n - 1}]"

    __repr__ = __str__


class Kernel:
    def __init__(self, name, max_v=256, max_a=256, max_s=100):
        self.name = name
        self.lines = []
        self.next = {"v": 0, "a": 0, "s": 0}
        self.hi = {"v": 0, "a": 0, "s": 0}
        self.lim = {"v": max_v, "a": max_a, "s": max_s}
        self.nlabel = 0

    def alloc(self, f, n=1, align=None):
        if align is None:
            align = 1 if n == 1 else (2 if n == 2 else 4)
        b = (self.next[f] + align - 1) // align * align
        assert b + n <= self.lim[f], f"out of {f} registers: want {n} at {b}"
        self.next[f] = b + n
        self.hi[f] = max(self.hi[f], b + n)
        return Reg(f, b, n)

    def v(self, n=1, align=None):
        return self.alloc("v", n, align)

    def a(self, n=1, align=None):
        return self.alloc("a", n, align)

    def s(self, n=1, align=None):
        return self.alloc("s", n, align)

    def mark(self):
        return dict(self.next)

    def release(self, m):
        self.next = dict(m)

    def emit(self, s):
        self.lines.append("    " + s)

    def __call__(self, op, *args, **kw):
        mods = kw.get("mods", "")
        if "offset:" in mods:
            off = int(mods.split("offset:")[1].split()[0])
            lim = 4096 if op.startswith("buffer_") else 65536
            assert 0 <= off < lim, f"{op}: offset {off} out of range"
        txt = op + " " + ", ".join(str(x) for x in args)
        if mods:
            txt += " " + mods
        if "c" in kw:
            txt += "   ; " + kw["c"]
        self.emit(txt)

    def comment(self, s):
        self.lines.append("    ; " + s)

    def label(self, name):
        self.lines.append(name + ":")

    def newlabel(self, stem="L"):
        self.nlabel += 1
        return f"{self.name}_{stem}{self.nlabel}"

    def text(self):
        out = [".globl " + self.name, ".p2align 8", f".type {self.name},@function",
               self.name + ":"]
        out += self.lines
        return "\n".join(out) + "\n"

    def descriptor(self, lds_static=0):
        nv = self.hi["v"]
        na = self.hi["a"]
        acc_off = max(4, (nv + 3) // 4 * 4)
        nfv = acc_off + na if na else nv
        if na:
            nfv = acc_off + na
        ns = max(self.hi["s"], 8)
        return f""".amdhsa_kernel {self.name}
  .amdhsa_next_free_vgpr {max(nfv, 8)}
  .amdhsa_next_free_sgpr {ns}
  .amdhsa_accum_offset {acc_off}
  .amdhsa_group_segment_fixed_size {lds_static}
  .amdhsa_kernarg_size 120
  .amdhsa_user_sgpr_count 2
  .amdhsa_user_sgpr_kernarg_segment_ptr 1
  .amdhsa_system_sgpr_workgroup_id_x 1
.end_amdhsa_kernel
"""


def build_file(header_lines, kernels):
    out = list(header_lines)
    out.append('.amdgcn_target "amdgcn-amd-amdhsa--gfx950"')
    out.append(".text")
    for k in kernels:
        out.append(k.text())
    out.append('.section .rodata,"a"')
    for k in kernels:
        out.append(".p2align 6")
        out.append(k.descriptor())
    return "\n".join(out) + "\n"
```

```python
from asmlib import Kernel, Reg, build_file

S = 2048
M = 512
H = 32
D = 128
HD = H * D
MB = 1 << 20

WS_Q = 0
WS_K = 16 * MB
WS_VT = 32 * MB
WS_CTX = 48 * MB
WS_QB = 64 * MB
WS_KF = 66 * MB
WS_VF = 66 * MB + 65536
WS_G = 66 * MB + 2 * 65536
WS_OB = 68 * MB
WS_PART = 72 * MB

KA_X, KA_CKV, KA_WQ, KA_WUK, KA_WUV, KA_WO = 0, 8, 16, 24, 32, 40
KA_BX, KA_BWQ, KA_BWK, KA_BWV, KA_BWO, KA_GW = 48, 56, 64, 72, 80, 88
KA_OUT, KA_DBG, KA_WS = 96, 104, 112


class Tracker:
    def __init__(self, k, name, maxcnt):
        self.k, self.name, self.maxcnt = k, name, maxcnt
        self.ops = []
        self.done = 0

    def issue(self, tag):
        if len(self.ops) - self.done >= self.maxcnt:
            self.wait_n(self.maxcnt - 4)
        self.ops.append(tag)

    def outstanding(self):
        return len(self.ops) - self.done

    def wait(self, tag=None, emit=True):
        if tag is None:
            idx = len(self.ops) - 1
        else:
            idx = None
            for j in range(len(self.ops) - 1, -1, -1):
                if self.ops[j] == tag:
                    idx = j
                    break
            if idx is None or idx < self.done:
                return
        n_after = len(self.ops) - 1 - idx
        if idx + 1 <= self.done:
            return
        if emit:
            self.k("s_waitcnt", f"{self.name}({n_after})")
        self.done = idx + 1

    def wait_n(self, n):
        self.k("s_waitcnt", f"{self.name}({n})")
        self.done = max(self.done, len(self.ops) - n)


def load_ptr(k, dst, off):
    k("s_load_dwordx2", dst, "s[0:1]", off)


def make_srd(k, srd, ptr, nbytes, add=0):
    if add:
        k("s_add_u32", srd[0], ptr[0], hex(add & 0xFFFFFFFF))
        k("s_addc_u32", srd[1], ptr[1], hex(add >> 32))
    else:
        k("s_mov_b32", srd[0], ptr[0])
        k("s_mov_b32", srd[1], ptr[1])
    k("s_mov_b32", srd[2], hex(nbytes))
    k("s_mov_b32", srd[3], "0x00020000")


from collections import deque


class Sched:
    def __init__(self):
        self.hi = deque()
        self.lo = deque()

    def add(self, fn, prio=False):
        (self.hi if prio else self.lo).append(fn)

    def pending(self):
        return len(self.hi) + len(self.lo)

    def pump(self, n=1):
        for _ in range(n):
            if self.hi:
                self.hi.popleft()()
            elif self.lo:
                self.lo.popleft()()
            else:
                return

    def drain(self):
        self.pump(self.pending())

    def pump_rate(self, remaining_primary):
        if remaining_primary <= 0:
            self.drain()
            return
        n = -(-self.pending() // remaining_primary)
        self.pump(n)
```

```python
from common import *


def gen_k0(name="small_kernel"):
    k = Kernel(name)
    k.s(4, 1)
    tid = k.v(1)
    k("s_cmp_ge_u32", "s2", 16)
    k("s_cbranch_scc1", name + "_end")
    p_x = k.s(2); p_wk = k.s(2); p_wv = k.s(2); p_gw = k.s(2); p_ws = k.s(2)
    load_ptr(k, p_x, KA_X); load_ptr(k, p_wk, KA_BWK); load_ptr(k, p_wv, KA_BWV)
    load_ptr(k, p_gw, KA_GW); load_ptr(k, p_ws, KA_WS)
    s_w = k.s(1); s_kt = k.s(1)
    vw = k.v(1); vi = k.v(1); vg = k.v(1); vl = k.v(1); vt1 = k.v(1); vt2 = k.v(1); vt3 = k.v(1)
    k("v_lshrrev_b32", vw, 6, tid)
    k("v_and_b32", vl, 63, tid)
    k("v_and_b32", vi, 31, tid)
    k("v_lshrrev_b32", vg, 5, vl)
    k("s_nop", 1)
    k("v_readfirstlane_b32", s_w, vw)
    k("s_waitcnt", "lgkmcnt(0)")
    srdX = k.s(4); srdK = k.s(4); srdV = k.s(4); srdG = k.s(4); srdKF = k.s(4); srdVF = k.s(4); srdGo = k.s(4)
    make_srd(k, srdX, p_x, S * M * 2)
    make_srd(k, srdK, p_wk, 512 * 16 * 2)
    make_srd(k, srdV, p_wv, 512 * 16 * 2)
    make_srd(k, srdG, p_gw, 512 * 2)
    make_srd(k, srdKF, p_ws, 65536, add=WS_KF)
    make_srd(k, srdVF, p_ws, 65536, add=WS_VF)
    make_srd(k, srdGo, p_ws, 2 * 2048 * 4, add=WS_G)
    k("s_lshl_b32", s_kt, "s2", 2)
    k("s_add_u32", s_kt, s_kt, s_w)
    ld = k.v(16, 4)
    k("v_lshlrev_b32", vt1, 6, tid)
    for r in range(2):
        k("buffer_load_dwordx4", ld[8 * r:8 * r + 4], vt1, srdK, 0, mods=f"offen offset:{32 * r}")
        k("buffer_load_dwordx4", ld[8 * r + 4:8 * r + 8], vt1, srdK, 0, mods=f"offen offset:{32 * r + 16}")
    lv = k.v(16, 4)
    for r in range(2):
        k("buffer_load_dwordx4", lv[8 * r:8 * r + 4], vt1, srdV, 0, mods=f"offen offset:{32 * r}")
        k("buffer_load_dwordx4", lv[8 * r + 4:8 * r + 8], vt1, srdV, 0, mods=f"offen offset:{32 * r + 16}")
    k("v_lshlrev_b32", vt2, 7, tid)
    k("s_waitcnt", "vmcnt(0)")
    for r in range(2):
        k("ds_write_b128", vt2, ld[8 * r:8 * r + 4], mods=f"offset:{64 * r}")
        k("ds_write_b128", vt2, ld[8 * r + 4:8 * r + 8], mods=f"offset:{64 * r + 16}")
        k("ds_write_b128", vt2, lv[8 * r:8 * r + 4], mods=f"offset:{64 * r + 32}")
        k("ds_write_b128", vt2, lv[8 * r + 4:8 * r + 8], mods=f"offset:{64 * r + 48}")
    xf = k.v(128, 4)
    gf = k.a(128, 4)
    k("s_lshl_b32", "s3", s_kt, 5)
    k("v_add_u32", vt1, "s3", vi)
    k("v_lshlrev_b32", vt1, 10, vt1)
    k("v_lshlrev_b32", vt3, 4, vg)
    k("v_add_u32", vt1, vt1, vt3)
    for s in range(32):
        k("buffer_load_dwordx4", xf[4 * s:4 * s + 4], vt1, srdX, 0, mods=f"offen offset:{32 * s}")
    for s in range(32):
        k("buffer_load_dwordx4", gf[4 * s:4 * s + 4], vt3, srdG, 0, mods=f"offen offset:{32 * s}")
    k("s_waitcnt", "lgkmcnt(0)")
    k("s_barrier")
    vq = k.v(1); vr = k.v(1); vwa = k.v(1)
    k("v_lshrrev_b32", vq, 4, vl)
    k("v_and_b32", vr, 15, vl)
    k("v_lshrrev_b32", vr, 2, vr)
    k("v_lshrrev_b32", vt1, 1, vq)
    k("v_lshlrev_b32", vt1, 3, vt1)
    k("v_add_u32", vt1, vt1, vr)
    k("v_lshlrev_b32", vt1, 6, vt1)
    k("v_and_b32", vt2, 1, vq)
    k("v_lshlrev_b32", vt2, 5, vt2)
    k("v_add_u32", vt1, vt1, vt2)
    k("v_and_b32", vt2, 3, vl)
    k("v_lshlrev_b32", vt2, 3, vt2)
    k("v_add_u32", vwa, vt1, vt2)
    d1 = k.v(16, 4); d2 = k.v(16, 4)
    wfr = [k.v(4, 4), k.v(4, 4)]
    k("s_waitcnt", "vmcnt(0)")
    for s in range(32):
        f = wfr[s % 2]
        k("ds_read_b64_tr_b16", f[0:2], vwa, mods=f"offset:{s * 1024}")
        k("ds_read_b64_tr_b16", f[2:4], vwa, mods=f"offset:{s * 1024 + 256}")
        k("s_waitcnt", "lgkmcnt(0)")
        k("v_mfma_f32_32x32x16_bf16", d1, f, xf[4 * s:4 * s + 4], 0 if s == 0 else d1)
        k("v_mfma_f32_32x32x16_bf16", d2, xf[4 * s:4 * s + 4], f, 0 if s == 0 else d2)
    acc = k.v(1); t0 = k.v(1); t1 = k.v(1); t2 = k.v(1); t3 = k.v(1); gw_lo = k.v(1)
    k("v_mov_b32", acc, 0)
    for s in range(32):
        for j in range(4):
            k("v_accvgpr_read_b32", gw_lo, gf[4 * s + j])
            xr = xf[4 * s + j]
            k("v_lshlrev_b32", t0, 16, xr)
            k("v_lshlrev_b32", t1, 16, gw_lo)
            k("v_mul_f32", t0, t0, t1)
            k("v_and_b32", t2, "0xffff0000", xr)
            k("v_and_b32", t3, "0xffff0000", gw_lo)
            k("v_mul_f32", t2, t2, t3)
            k("v_cvt_pk_bf16_f32", t0, t0, t2)
            k("v_lshlrev_b32", t1, 16, t0)
            k("v_and_b32", t2, "0xffff0000", t0)
            k("v_add_f32", acc, acc, t1)
            k("v_add_f32", acc, acc, t2)
    k("v_mov_b32", t0, acc)
    k("s_nop", 1)
    k("v_permlane32_swap_b32", acc, t0)
    k("v_add_f32", acc, acc, t0)
    k("v_cvt_pk_bf16_f32", acc, acc, acc)
    k("v_lshlrev_b32", acc, 16, acc)
    k("v_mul_f32", t0, "0xbfb8aa3b", acc)
    k("v_exp_f32", t0, t0)
    k("s_nop", 0)
    k("v_add_f32", t0, 1.0, t0)
    k("v_rcp_f32", t0, t0)
    k("s_nop", 0)
    k("v_cvt_pk_bf16_f32", t0, t0, t0)
    k("v_lshlrev_b32", t0, 16, t0)
    k("v_sub_f32", t1, 1.0, t0)
    k("v_cvt_pk_bf16_f32", t1, t1, t1)
    k("v_lshlrev_b32", t1, 16, t1)
    k("s_lshl_b32", "s3", s_kt, 7)
    k("v_lshlrev_b32", t2, 2, vi)
    k("v_add_u32", t2, "s3", t2)
    k("buffer_store_dword", t0, t2, srdGo, 0, mods="offen")
    k("buffer_store_dword", t1, t2, srdGo, 0, mods="offen offset:0", c="placeholder")
    k.lines.pop()
    k("v_add_u32", t3, 8192, t2)
    k("buffer_store_dword", t1, t3, srdGo, 0, mods="offen")
    p = k.v(4, 4)
    k("s_nop", 7)
    k("v_cvt_pk_bf16_f32", p[0], d1[0], d1[1])
    k("v_cvt_pk_bf16_f32", p[1], d1[2], d1[3])
    k("v_cvt_pk_bf16_f32", p[2], d1[4], d1[5])
    k("v_cvt_pk_bf16_f32", p[3], d1[6], d1[7])
    k("s_nop", 1)
    k("v_permlane32_swap_b32", p[0], p[2])
    k("v_permlane32_swap_b32", p[1], p[3])
    k("v_and_b32", t0, 4, vi)
    k("v_lshlrev_b32", t0, 1, t0)
    k("v_and_b32", t1, 8, vi)
    k("v_lshrrev_b32", t1, 1, t1)
    k("v_and_b32", t2, 0x13, vi)
    k("v_or_b32", t0, t0, t1)
    k("v_or_b32", t0, t0, t2)
    k("v_lshlrev_b32", t1, 5, vg)
    k("v_add_u32", t0, t0, t1)
    k("v_lshlrev_b32", t0, 4, t0)
    k("s_lshl_b32", "s3", s_kt, 10)
    k("v_add_u32", t0, "s3", t0)
    k("buffer_store_dwordx4", p, t0, srdKF, 0, mods="offen")
    p2 = k.v(8, 4)
    for jj in range(2):
        q = p2[4 * jj:4 * jj + 4]
        j0, j1 = 2 * jj, 2 * jj + 1
        k("v_cvt_pk_bf16_f32", q[0], d2[4 * j0], d2[4 * j0 + 1])
        k("v_cvt_pk_bf16_f32", q[1], d2[4 * j0 + 2], d2[4 * j0 + 3])
        k("v_cvt_pk_bf16_f32", q[2], d2[4 * j1], d2[4 * j1 + 1])
        k("v_cvt_pk_bf16_f32", q[3], d2[4 * j1 + 2], d2[4 * j1 + 3])
        k("s_nop", 1)
        k("v_permlane32_swap_b32", q[0], q[2])
        k("v_permlane32_swap_b32", q[1], q[3])
    k("v_subrev_u32", t0, 16, vi)
    k("v_lshlrev_b32", t0, 4, t0)
    k("v_lshlrev_b32", t1, 8, vg)
    k("v_add_u32", t0, t0, t1)
    k("v_add_u32", t0, "s3", t0)
    k("v_cmp_le_u32", "vcc", 16, vi)
    sx = k.s(2)
    k("s_and_saveexec_b64", sx, "vcc")
    k("buffer_store_dwordx4", p2[0:4], t0, srdVF, 0, mods="offen")
    k("buffer_store_dwordx4", p2[4:8], t0, srdVF, 0, mods="offen offset:512")
    k("s_mov_b64", "exec", sx)
    k.label(name + "_end")
    k("s_endpgm")
    return k


if __name__ == "__main__":
    from k1_proj import gen_k1, LDS_K1
    k0 = gen_k0()
    print(k0.hi)
    k1 = gen_k1()
    k1b = gen_k1("projb_kernel", variant="B")
    hdr = ["; @launch kernel=small_kernel grid=(16,1,1) block=(256,1,1) lds=32768",
           f"; @launch kernel=proj_kernel grid=(256,1,1) block=(256,1,1) lds={LDS_K1}",
           f"; @launch kernel=projb_kernel grid=(32,1,1) block=(256,1,1) lds={LDS_K1}"]
    open("out_p1.s", "w").write(build_file(hdr, [k0, k1, k1b]))
```

```python
from common import *

WR = 4
CH = 16384
XR = 3
XCH = 32768
XBASE = WR * CH
LDS_K1 = XBASE + XR * XCH


def gen_k1(name="proj_kernel", no_store=False, stamp=False, variant="A"):
    k = Kernel(name)
    k.s(4, 1)
    vm = Tracker(k, "vmcnt", 60)
    lg = Tracker(k, "lgkmcnt", 15)
    tid = k.v(1)

    A = variant == "A"
    LDW = 8192 if A else 1024
    LDW_SH = 13 if A else 10
    k("s_cmp_ge_u32", "s2", 256 if A else 32)
    k("s_cbranch_scc1", name + "_end")
    if stamp:
        st0 = k.s(8, 4)
        k("s_memrealtime", st0[0:2])
        k("s_memtime", st0[2:4])

    p_x = k.s(2); p_c = k.s(2); p_wq = k.s(2); p_wuk = k.s(2); p_wuv = k.s(2); p_ws = k.s(2)
    load_ptr(k, p_x, KA_X); load_ptr(k, p_c, KA_CKV); load_ptr(k, p_wq, KA_WQ if A else KA_BWQ)
    load_ptr(k, p_wuk, KA_WUK); load_ptr(k, p_wuv, KA_WUV); load_ptr(k, p_ws, KA_WS)
    s_mb = k.s(1); s_t = k.s(1); s_w = k.s(1)
    k("s_lshr_b32", s_mb, "s2", 5 if A else 2)
    k("s_and_b32", s_t, "s2", 31 if A else 3)
    vdma = k.v(1); vxd = k.v(2, 1); vxr = k.v(4, 1); vxr2 = k.v(4, 1); vwa = k.v(4, 1); vol = k.v(1)
    acc = k.v(128, 4)
    wf = [k.v(16, 4), k.v(16, 4)]
    pkbuf = k.v(64, 4)
    vw, vi, vg, vl, vt1, vt2, vt3, vq, vr = (pkbuf[j] for j in range(9))
    k("v_lshrrev_b32", vw, 6, tid)
    k("v_and_b32", vl, 63, tid)
    k("v_and_b32", vi, 31, tid)
    k("v_lshrrev_b32", vg, 5, vl)
    k("s_nop", 1)
    k("v_readfirstlane_b32", s_w, vw)
    k("s_waitcnt", "lgkmcnt(0)")
    srdX = k.s(4); srdC = k.s(4)
    srdW = [k.s(4) for _ in range(3)]
    srdO = [k.s(4) for _ in range(3)]
    make_srd(k, srdX, p_x, S * M * 2)
    make_srd(k, srdC, p_c, S * M * 2)
    for sr, p in zip(srdW, (p_wq, p_wuk, p_wuv)):
        make_srd(k, sr, p, M * HD * 2 if A else M * M * 2)
    for sr, off in zip(srdO, (WS_Q, WS_K, WS_VT) if A else (WS_QB, WS_QB, WS_QB)):
        make_srd(k, sr, p_ws, S * HD * 2 if A else S * M * 2, add=off)

    k("v_lshrrev_b32", vt1, 4, vl)
    k("v_lshlrev_b32", vt2, 2, vt1)
    k("v_and_b32", vdma, 15, vl)
    k("v_xor_b32", vdma, vdma, vt2)
    k("v_lshlrev_b32", vdma, 4, vdma)
    k("v_lshlrev_b32", vt1, LDW_SH, vt1)
    k("v_add_u32", vdma, vdma, vt1)
    for par in range(2):
        k("v_lshrrev_b32", vt1, 4, vl)
        k("v_add_u32", vt1, 4 * par, vt1)
        k("v_and_b32", vt1, 7, vt1)
        k("v_and_b32", vt2, 7, vl)
        k("v_xor_b32", vt1, vt1, vt2)
        k("v_lshlrev_b32", vt1, 4, vt1)
        k("v_lshrrev_b32", vt2, 3, vl)
        k("v_lshlrev_b32", vt2, 10, vt2)
        k("v_add_u32", vxd[par], vt1, vt2)
    k("v_lshlrev_b32", vt1, 6, vw)
    k("v_add_u32", vt1, vt1, vi)
    k("v_lshlrev_b32", vt1, 7, vt1)
    k("v_lshrrev_b32", vt2, 1, vi)
    k("v_and_b32", vt2, 7, vt2)
    k("v_lshlrev_b32", vt3, 2, vg)
    for sp in range(4):
        k("v_add_u32", vxr[sp], sp, vt3)
        k("v_xor_b32", vxr[sp], vxr[sp], vt2)
        k("v_lshlrev_b32", vxr[sp], 4, vxr[sp])
        k("v_add_u32", vxr[sp], vxr[sp], vt1)
        k("v_add_u32", vxr[sp], XBASE, vxr[sp])
    for sp in range(4):
        k("v_add_u32", vxr2[sp], 65536, vxr[sp])
    s_wb = k.s(1); s_tmp = k.s(1); s_m0w = k.s(1); s_xb = k.s(1); s_m0x = k.s(1)
    s_oq = k.s(1); s_ov = k.s(1)
    k("s_lshl_b32", s_wb, s_w, LDW_SH + 4)
    k("s_lshl_b32", s_tmp, s_t, 8)
    k("s_add_u32", s_wb, s_wb, s_tmp)
    k("s_lshl_b32", s_m0w, s_w, 12)
    k("s_lshl_b32", s_xb, s_mb, 8)
    k("s_lshl_b32", s_tmp, s_w, 6)
    k("s_add_u32", s_xb, s_xb, s_tmp)
    k("s_lshl_b32", s_xb, s_xb, 10)
    k("s_lshl_b32", s_m0x, s_w, 13)
    k("s_lshl_b32", s_oq, s_t, 6 if A else 9)
    k("s_lshl_b32", s_tmp, s_mb, 3)
    k("s_add_u32", s_oq, s_oq, s_tmp)
    k("s_lshl_b32", s_tmp, s_w, 1)
    k("s_add_u32", s_oq, s_oq, s_tmp)
    k("s_lshl_b32", s_oq, s_oq, 13 if A else 10)
    k("s_lshl_b32", s_ov, s_t, 9)
    k("s_lshl_b32", s_tmp, s_mb, 4)
    k("s_add_u32", s_ov, s_ov, s_tmp)
    k("s_lshl_b32", s_tmp, s_w, 2)
    k("s_add_u32", s_ov, s_ov, s_tmp)
    k("s_lshl_b32", s_ov, s_ov, 10)
    k("v_lshrrev_b32", vq, 4, vl)
    k("v_and_b32", vr, 15, vl)
    k("v_lshrrev_b32", vr, 2, vr)
    k("v_lshrrev_b32", vt1, 1, vq)
    k("v_lshlrev_b32", vt1, 5, vt1)
    k("v_add_u32", vt1, vt1, vr)
    k("v_lshlrev_b32", vt1, 8, vt1)
    k("v_and_b32", vt2, 1, vq)
    k("v_lshlrev_b32", vt2, 5, vt2)
    k("v_add_u32", vt1, vt1, vt2)
    k("v_and_b32", vt2, 3, vl)
    k("v_lshlrev_b32", vt2, 3, vt2)
    k("v_add_u32", vt1, vt1, vt2)
    for nt in range(4):
        k("v_xor_b32", vt2, nt, vr)
        k("v_lshlrev_b32", vt2, 6, vt2)
        k("v_add_u32", vwa[nt], vt1, vt2)
    k("v_lshlrev_b32", vol, 4, vl)

    xf = k.a(256, 4)

    def X(mt, ks):
        return xf[(mt * 32 + ks) * 4:(mt * 32 + ks) * 4 + 4]

    def ACC(mt, nt):
        return acc[(mt * 4 + nt) * 16:(mt * 4 + nt) * 16 + 16]

    tiles = [(srdW[0], 0), (srdW[1], 1), (srdW[2], 2)] if A else [(srdW[0], 0)]
    NT = len(tiles)
    NXC = 16 if A else 8
    steps = [(tl, c) for tl in range(NT) for c in range(8)]
    NS = len(steps)

    sch = Sched()
    slow = []

    def dma_w(n):
        tl, c = steps[n]
        buf = n % WR
        for j in range(4):
            def f(j=j):
                k("s_add_u32", s_tmp, s_wb, hex((64 * c + 4 * j) * LDW))
                k("s_add_u32", "m0", s_m0w, hex(buf * CH + j * 1024))
                k("buffer_load_dwordx4", vdma, tiles[tl][0], s_tmp, mods="offen lds")
                vm.issue(("w", n))
            sch.add(f)

    def dma_x(xc):
        buf = xc % XR
        srd = srdX if xc < 8 else srdC
        c = xc % 8
        for j in range(8):
            def f(j=j):
                k("s_add_u32", s_tmp, s_xb, hex(8 * j * 1024 + 128 * c))
                k("s_add_u32", "m0", s_m0x, hex(XBASE + buf * XCH + j * 1024))
                k("buffer_load_dwordx4", vxd[j % 2], srd, s_tmp, mods="offen lds")
                vm.issue(("x", xc))
            sch.add(f)

    def read_x(xc, prio=False):
        buf = xc % XR
        c = xc % 8
        for mt in range(2):
            for sp in range(4):
                def f(mt=mt, sp=sp):
                    off = buf * XCH + mt * 4096
                    if off < 65536:
                        k("ds_read_b128", X(mt, 4 * c + sp), vxr[sp], mods=f"offset:{off}")
                    else:
                        k("ds_read_b128", X(mt, 4 * c + sp), vxr2[sp], mods=f"offset:{off - 65536}")
                    lg.issue(("xr", xc, mt, sp))
                sch.add(f, prio)

    def read_w(n, sp, fb):
        buf = n % WR
        for nt in range(4):
            def f(nt=nt):
                for h in range(2):
                    k("ds_read_b64_tr_b16", wf[fb][nt * 4 + 2 * h:nt * 4 + 2 * h + 2], vwa[nt],
                      mods=f"offset:{buf * CH + sp * 2048 + h * 1024}")
                    lg.issue(("wr", n, sp, nt))
            sch.add(f, prio=True)

    def epi_piece(tl, mt, nt, jj, defer=True):
        mode = tiles[tl][1]
        a_ = ACC(mt, nt)
        pi = ((mt * 4 + nt) * 2 + jj) * 4
        p = pkbuf[pi:pi + 4]
        j0, j1 = 2 * jj, 2 * jj + 1
        k("v_cvt_pk_bf16_f32", p[0], a_[4 * j0], a_[4 * j0 + 1])
        k("v_cvt_pk_bf16_f32", p[1], a_[4 * j0 + 2], a_[4 * j0 + 3])
        k("v_cvt_pk_bf16_f32", p[2], a_[4 * j1], a_[4 * j1 + 1])
        k("v_cvt_pk_bf16_f32", p[3], a_[4 * j1 + 2], a_[4 * j1 + 3])
        k("s_nop", 1)
        k("v_permlane32_swap_b32", p[0], p[2])
        k("v_permlane32_swap_b32", p[1], p[3])

        def st():
            if mode < 2:
                off = mt * 8192 + (2 * nt + jj) * 1024 if A else ((2 * nt + jj) * 64 + mt) * 1024
                k("s_add_u32", s_tmp, s_oq, hex(off))
                sr = srdO[mode]
            else:
                off = nt * 128 * 1024 + (2 * mt + jj) * 1024
                k("s_add_u32", s_tmp, s_ov, hex(off))
                sr = srdO[2]
            if not no_store:
                k("buffer_store_dwordx4", p, vol, sr, s_tmp, mods="offen")
                vm.issue(("st", tl))
        if defer:
            slow.append(st)
        else:
            st()

    def mfma(mode, mt, nt, ks, fb, first):
        cc = 0 if first else ACC(mt, nt)
        wfr = wf[fb][nt * 4:nt * 4 + 4]
        if mode < 2:
            k("v_mfma_f32_32x32x16_bf16", ACC(mt, nt), wfr, X(mt, ks), cc)
        else:
            k("v_mfma_f32_32x32x16_bf16", ACC(mt, nt), X(mt, ks), wfr, cc)

    for j in range(3):
        dma_x(j); dma_w(j)
    sch.drain()
    vm.wait(("w", 0))
    k("s_barrier")
    read_x(0); read_w(0, 0, 0)
    sch.drain()

    if stamp:
        vstamp = k.v(1)
        stt = k.s(2)
        k("v_mov_b32", vstamp, 0)

        def do_stamp(idx):
            k("s_memtime", stt)
            k("s_waitcnt", "lgkmcnt(0)")
            k("v_writelane_b32", vstamp, stt[0], idx)
            lg.done = len(lg.ops)
    gk = 0
    order = [(mt, nt) for nt in range(4) for mt in range(2)]
    for n in range(NS):
        tl, c = steps[n]
        mode = tiles[tl][1]
        if stamp:
            do_stamp(n)
        if n + 1 < NS:
            sch.drain()
            vm.wait(("w", n + 1))
            k("s_barrier")
            if n + 1 < NXC:
                read_x(n + 1)
            if n + 3 < NXC:
                dma_x(n + 3)
            if n + 3 < NS:
                dma_w(n + 3)
        for sp in range(4):
            ks = 4 * c + sp
            fb = gk % 2
            if sp < 3:
                read_w(n, sp + 1, 1 - fb)
            elif n + 1 < NS:
                read_w(n + 1, 0, 1 - fb)
            first = (c == 0 and sp == 0)
            remaining = (4 - sp) * 8
            for idx, (mt, nt) in enumerate(order):
                if first and tl > 0:
                    for jj in range(2):
                        epi_piece(tl - 1, mt, nt, jj)
                lg.wait(("wr", n, sp, nt))
                if sp == 0 or True:
                    lg.wait(("xr", n if n < NXC else -1, mt, sp))
                mfma(mode, mt, nt, ks, fb, first)
                remaining -= 1
                if idx == 4 and slow and not first:
                    slow.pop(0)()
                sch.pump_rate(remaining if sp == 3 else max(remaining, 1))
            if c == 7 and sp == 3:
                k("s_nop", 7)
            gk += 1
    k("s_nop", 15)
    for (mt, nt) in order:
        for jj in range(2):
            epi_piece(NT - 1, mt, nt, jj, defer=False)
    if stamp:
        do_stamp(24)
        k("s_waitcnt", "vmcnt(0)")
        do_stamp(25)
        k("s_memrealtime", st0[4:6])
        k("s_memtime", st0[6:8])
        k("s_waitcnt", "lgkmcnt(0)")
        srdD = k.s(4)
        make_srd(k, srdD, p_ws, 1 << 20, add=WS_PART + (1 << 20))
        srdD2 = k.s(4)
        make_srd(k, srdD2, p_ws, 1 << 20, add=WS_PART)
        vs = k.v(8, 4)
        for j in range(8):
            k("v_mov_b32", vs[j], st0[j])
        k("s_lshl_b32", "s3", "s2", 5)
        k("s_lshl_b32", s_tmp, s_w, 13)
        k("s_add_u32", "s3", "s3", s_tmp)
        k("v_mov_b32", vt1, "s3")
        k("buffer_store_dwordx4", vs[0:4], vt1, srdD2, 0, mods="offen")
        k("buffer_store_dwordx4", vs[4:8], vt1, srdD2, 0, mods="offen offset:16")
        k("v_lshlrev_b32", vt2, 2, vol)
        k("v_lshrrev_b32", vt2, 4, vt2)
        k("s_lshl_b32", "s3", "s2", 8)
        k("s_lshl_b32", s_tmp, s_w, 16)
        k("s_add_u32", "s3", "s3", s_tmp)
        k("v_add_u32", vt2, "s3", vt2)
        k("buffer_store_dword", vstamp, vt2, srdD, 0, mods="offen offset:0")
    k.label(name + "_end")
    k("s_endpgm")
    return k


if __name__ == "__main__":
    kk = gen_k1()
    hdr = [f"; @launch kernel=proj_kernel grid=(256,1,1) block=(256,1,1) lds={LDS_K1}"]
    open("out_k1.s", "w").write(build_file(hdr, [kk]))
    print("regs", kk.hi, "lds", LDS_K1)
    kb = gen_k1("projb_kernel", variant="B")
    hdr2 = hdr + [f"; @launch kernel=projb_kernel grid=(32,1,1) block=(256,1,1) lds={LDS_K1}"]
    open("out_k1ab.s", "w").write(build_file(hdr2, [kk, kb]))
    kk = gen_k1(stamp=True)
    open("out_k1s.s", "w").write(build_file(hdr, [kk]))
```

```python
import math
from common import *

CSC = float(128 ** -0.5 * math.log2(math.e))


def f2hex(f):
    import struct
    return hex(struct.unpack("<I", struct.pack("<f", f))[0])


def gen_k2a(name="attna_kernel", nwg=256):
    k = Kernel(name)
    k.s(4, 1)
    tid = k.v(1)
    k("s_cmp_ge_u32", "s2", nwg)
    k("s_cbranch_scc1", name + "_end")
    p_ws = k.s(2)
    load_ptr(k, p_ws, KA_WS)
    s_h = k.s(1); s_i = k.s(1); s_w = k.s(1)
    k("s_and_b32", s_h, "s2", 31)
    k("s_lshr_b32", s_i, "s2", 5)
    vl = k.v(1); vi = k.v(1); vg = k.v(1); vt1 = k.v(1); vt2 = k.v(1)
    k("v_lshrrev_b32", vt1, 6, tid)
    k("v_and_b32", vl, 63, tid)
    k("v_and_b32", vi, 31, tid)
    k("v_lshrrev_b32", vg, 5, vl)
    k("s_nop", 1)
    k("v_readfirstlane_b32", s_w, vt1)
    k("s_waitcnt", "lgkmcnt(0)")
    srdQ = k.s(4); srdK = k.s(4); srdV = k.s(4); srdO = k.s(4)
    make_srd(k, srdQ, p_ws, 16 * MB, add=WS_Q)
    make_srd(k, srdK, p_ws, 16 * MB, add=WS_K)
    make_srd(k, srdV, p_ws, 16 * MB, add=WS_VT)
    make_srd(k, srdO, p_ws, 16 * MB, add=WS_CTX)
    s_c = k.s(1); s_nc = k.s(1)
    k("s_mov_b32", s_c, f2hex(CSC))
    k("s_mov_b32", s_nc, f2hex(-CSC))
    s_qt = [k.s(1), k.s(1)]
    k("s_lshl_b32", s_qt[0], s_i, 2)
    k("s_add_u32", s_qt[0], s_qt[0], s_w)
    k("s_sub_u32", s_qt[1], 15, s_i)
    k("s_lshl_b32", s_qt[1], s_qt[1], 2)
    k("s_add_u32", s_qt[1], s_qt[1], s_w)
    s_nL = k.s(1); s_nH = k.s(1); s_j = k.s(1); s_tmp = k.s(1); s_tmp2 = k.s(1)
    k("s_lshl_b32", s_nL, s_i, 1)
    k("s_add_u32", s_nL, s_nL, 2)
    k("s_sub_u32", s_nH, 16, s_i)
    k("s_lshl_b32", s_nH, s_nH, 1)
    vol = k.v(1)
    k("v_lshlrev_b32", vol, 4, vl)
    qa = [k.a(32, 4), k.a(32, 4) ]
    for T in range(2):
        k("s_lshl_b32", s_tmp, s_h, 6)
        k("s_add_u32", s_tmp, s_tmp, s_qt[T])
        k("s_lshl_b32", s_tmp, s_tmp, 13)
        for ds in range(8):
            if ds == 4:
                k("s_add_u32", s_tmp, s_tmp, 4096)
            k("buffer_load_dwordx4", qa[T][4 * ds:4 * ds + 4], vol, srdQ, s_tmp, mods=f"offen offset:{(ds % 4) * 1024}")
    s_ko = k.s(1); s_vo = k.s(1); s_lb = k.s(1); s_m0k = k.s(1); s_m0v = k.s(1)
    k("s_lshl_b32", s_ko, s_h, 19)
    k("s_lshl_b32", s_tmp, s_w, 12)
    k("s_add_u32", s_ko, s_ko, s_tmp)
    k("s_lshl_b32", s_vo, s_h, 2)
    k("s_add_u32", s_vo, s_vo, s_w)
    k("s_lshl_b32", s_vo, s_vo, 17)
    k("s_lshl_b32", s_m0k, s_w, 12)
    k("s_lshl_b32", s_m0v, s_w, 12)
    k("s_add_u32", s_m0v, s_m0v, 16384)

    def dma_block():
        for d in range(4):
            k("s_add_u32", s_tmp, s_ko, hex(d * 1024))
            k("s_add_u32", s_tmp2, s_m0k, s_lb)
            k("s_add_u32", "m0", s_tmp2, hex(d * 1024))
            k("buffer_load_dwordx4", vol, srdK, s_tmp, mods="offen lds")
        for d in range(4):
            k("s_add_u32", s_tmp, s_vo, hex(d * 1024))
            k("s_add_u32", s_tmp2, s_m0v, s_lb)
            k("s_add_u32", "m0", s_tmp2, hex(d * 1024))
            k("buffer_load_dwordx4", vol, srdV, s_tmp, mods="offen lds")
        k("s_add_u32", s_ko, s_ko, 16384)
        k("s_add_u32", s_vo, s_vo, 4096)

    vka = k.v(1); vva = k.v(1)
    k("v_and_b32", vt1, 4, vi)
    k("v_lshlrev_b32", vt1, 1, vt1)
    k("v_and_b32", vt2, 8, vi)
    k("v_lshrrev_b32", vt2, 1, vt2)
    k("v_or_b32", vt1, vt1, vt2)
    k("v_and_b32", vt2, 0x13, vi)
    k("v_or_b32", vt1, vt1, vt2)
    k("v_lshlrev_b32", vt2, 5, vg)
    k("v_add_u32", vt1, vt1, vt2)
    k("v_lshlrev_b32", vka, 4, vt1)
    k("v_add_u32", vva, 16384, vol)
    vmb = k.v(1)
    k("v_lshlrev_b32", vt1, 3, vg)
    k("v_sub_u32", vmb, vi, vt1)
    ka = k.a(64, 4); va = k.a(64, 4)
    O = [k.v(64, 4), k.v(64, 4)]
    Sx = k.v(32, 4)
    P = k.v(16, 4)
    m = [k.v(1), k.v(1)]; lsum = [k.v(1), k.v(1)]
    t0 = k.v(1); t1 = k.v(1); alpha = k.v(1); nmc = k.v(1); vD = k.v(1); vninf = k.v(1)
    k("v_mov_b32", vninf, "0xff800000")
    for T in range(2):
        k("v_mov_b32", m[T], "0xff800000")
        k("v_mov_b32", lsum[T], 0)
        for r in range(64):
            k("v_mov_b32", O[T][r], 0)
    k("s_mov_b32", s_lb, 0)
    dma_block()
    k("s_mov_b32", s_j, 0)
    k("s_waitcnt", "vmcnt(0)")

    def tile(T):
        lab_nomask = k.newlabel("nm")
        for kt in range(2):
            s_ = Sx[16 * kt:16 * kt + 16]
            for ds in range(8):
                k("v_mfma_f32_32x32x16_bf16", s_, ka[(kt * 8 + ds) * 4:(kt * 8 + ds) * 4 + 4],
                  qa[T][4 * ds:4 * ds + 4], 0 if ds == 0 else s_)
        k("s_lshl_b32", s_tmp, s_j, 1)
        k("s_add_u32", s_tmp, s_tmp, 1)
        k("s_cmp_lt_u32", s_tmp, s_qt[T])
        k("s_nop", 7)
        k("s_nop", 7)
        k("s_cbranch_scc1", lab_nomask)
        k("s_lshl_b32", s_tmp, s_qt[T], 5)
        k("s_lshl_b32", s_tmp2, s_j, 6)
        k("s_sub_u32", s_tmp, s_tmp, s_tmp2)
        k("v_add_u32", vD, s_tmp, vmb)
        for kt in range(2):
            for r in range(16):
                cst = 32 * kt + 16 * (r >> 3) + (r & 7)
                k("v_cmp_gt_i32", "vcc", cst, vD)
                k("s_nop", 1)
                k("v_cndmask_b32", Sx[16 * kt + r], Sx[16 * kt + r], vninf, "vcc")
        k.label(lab_nomask)
        k("v_max3_f32", t0, Sx[0], Sx[1], Sx[2])
        for r in range(3, 31, 2):
            k("v_max3_f32", t0, t0, Sx[r], Sx[r + 1])
        k("v_max_f32", t0, t0, Sx[31])
        k("v_mov_b32", t1, t0)
        k("s_nop", 1)
        k("v_permlane32_swap_b32", t0, t1)
        k("v_max_f32", t0, t0, t1)
        k("v_max_f32", t0, t0, m[T])
        k("v_sub_f32", alpha, m[T], t0)
        k("v_mul_f32", alpha, s_c, alpha)
        k("v_exp_f32", alpha, alpha)
        k("v_mov_b32", m[T], t0)
        k("v_mul_f32", nmc, s_nc, t0)
        for r in range(32):
            k("v_fma_f32", Sx[r], Sx[r], s_c, nmc)
        for r in range(32):
            k("v_exp_f32", Sx[r], Sx[r])
        k("v_mul_f32", lsum[T], lsum[T], alpha)
        for r in range(32):
            k("v_add_f32", lsum[T], lsum[T], Sx[r])
        for r in range(64):
            k("v_mul_f32", O[T][r], O[T][r], alpha)
        for ks in range(4):
            for q in range(4):
                k("v_cvt_pk_bf16_f32", P[4 * ks + q], Sx[8 * ks + 2 * q], Sx[8 * ks + 2 * q + 1])
        k("s_nop", 1)
        for ks in range(4):
            for dt in range(4):
                k("v_mfma_f32_32x32x16_bf16", O[T][16 * dt:16 * dt + 16], va[(dt * 4 + ks) * 4:(dt * 4 + ks) * 4 + 4],
                  P[4 * ks:4 * ks + 4], O[T][16 * dt:16 * dt + 16])

    loop = name + "_loop"
    skipL = name + "_skipL"
    k.label(loop)
    k("s_waitcnt", "vmcnt(0)")
    k("s_barrier")
    for f in range(16):
        k("ds_read_b128", ka[4 * f:4 * f + 4], vka, mods=f"offset:{f * 1024}")
    for f in range(16):
        k("ds_read_b128", va[4 * f:4 * f + 4], vva, mods=f"offset:{f * 1024}")
    k("s_xor_b32", s_lb, s_lb, 32768)
    k("s_add_u32", s_tmp, s_j, 1)
    k("s_cmp_ge_u32", s_tmp, s_nH)
    k("s_cbranch_scc1", name + "_nodma")
    dma_block()
    k.label(name + "_nodma")
    k("v_xor_b32", vka, 32768, vka)
    k("v_xor_b32", vva, 32768, vva)
    k("s_waitcnt", "lgkmcnt(0)")
    k("s_cmp_ge_u32", s_j, s_nL)
    k("s_cbranch_scc1", skipL)
    tile(0)
    k.label(skipL)
    tile(1)
    k("s_add_u32", s_j, s_j, 1)
    k("s_cmp_lt_u32", s_j, s_nH)
    k("s_cbranch_scc1", loop)
    k("s_nop", 7)
    k("s_nop", 7)
    pk = k.v(4, 4)
    for T in range(2):
        k("v_mov_b32", t0, lsum[T])
        k("s_nop", 1)
        k("v_permlane32_swap_b32", lsum[T], t0)
        k("v_add_f32", t0, t0, lsum[T])
        k("v_rcp_f32", t0, t0)
        k("s_nop", 0)
        for r in range(64):
            k("v_mul_f32", O[T][r], O[T][r], t0)
        k("s_lshl_b32", s_tmp, s_qt[T], 8)
        k("s_lshl_b32", s_tmp2, s_h, 3)
        k("s_add_u32", s_tmp, s_tmp, s_tmp2)
        k("s_lshl_b32", s_tmp, s_tmp, 10)
        for dt in range(4):
            a_ = O[T][16 * dt:16 * dt + 16]
            for jj in range(2):
                j0, j1 = 2 * jj, 2 * jj + 1
                k("v_cvt_pk_bf16_f32", pk[0], a_[4 * j0], a_[4 * j0 + 1])
                k("v_cvt_pk_bf16_f32", pk[1], a_[4 * j0 + 2], a_[4 * j0 + 3])
                k("v_cvt_pk_bf16_f32", pk[2], a_[4 * j1], a_[4 * j1 + 1])
                k("v_cvt_pk_bf16_f32", pk[3], a_[4 * j1 + 2], a_[4 * j1 + 3])
                k("s_nop", 1)
                k("v_permlane32_swap_b32", pk[0], pk[2])
                k("v_permlane32_swap_b32", pk[1], pk[3])
                if dt == 2 and jj == 0:
                    k("s_add_u32", s_tmp, s_tmp, 4096)
                k("buffer_store_dwordx4", pk, vol, srdO, s_tmp, mods=f"offen offset:{((2 * dt + jj) % 4) * 1024}")
                k("s_nop", 1)
    k.label(name + "_end")
    k("s_endpgm")
    return k


if __name__ == "__main__":
    from k1_proj import gen_k1, LDS_K1
    k1 = gen_k1()
    k2 = gen_k2a()
    print(k2.hi)
    hdr = [f"; @launch kernel=proj_kernel grid=(256,1,1) block=(256,1,1) lds={LDS_K1}",
           "; @launch kernel=attna_kernel grid=(256,1,1) block=(256,1,1) lds=65536"]
    open("out_k2a.s", "w").write(build_file(hdr, [k1, k2]))
```

```python
import math
import struct
from common import *

CSB = float(0.25 * math.log2(math.e))


def f2hex(f):
    return hex(struct.unpack("<I", struct.pack("<f", f))[0])


def gen_k2b(name="attnb_kernel", nwg=256):
    k = Kernel(name)
    k.s(4, 1)
    tid = k.v(1)
    k("s_cmp_ge_u32", "s2", nwg)
    k("s_cbranch_scc1", name + "_end")
    p_ws = k.s(2)
    load_ptr(k, p_ws, KA_WS)
    s_w = k.s(1); s_h = k.s(1); s_qt = k.s(1); s_tmp = k.s(1); s_tmp2 = k.s(1)
    vl = k.v(1); vi = k.v(1); vg = k.v(1); vt1 = k.v(1); vol = k.v(1)
    k("v_lshrrev_b32", vt1, 6, tid)
    k("v_and_b32", vl, 63, tid)
    k("v_and_b32", vi, 31, tid)
    k("v_lshrrev_b32", vg, 5, vl)
    k("v_lshlrev_b32", vol, 4, vl)
    k("s_nop", 0)
    k("v_readfirstlane_b32", s_w, vt1)
    k("s_waitcnt", "lgkmcnt(0)")
    srdF = k.s(4); srdQ = k.s(4); srdO = k.s(4)
    make_srd(k, srdF, p_ws, 131072, add=WS_KF)
    make_srd(k, srdQ, p_ws, 2 * MB, add=WS_QB)
    make_srd(k, srdO, p_ws, 2 * MB, add=WS_OB)
    k("s_lshl_b32", s_tmp, "s2", 3)
    k("s_add_u32", s_tmp, s_tmp, s_w)
    k("s_and_b32", s_h, s_tmp, 31)
    k("s_lshr_b32", s_qt, s_tmp, 5)
    k("s_lshl_b32", s_tmp2, s_w, 14)
    for j in range(16):
        k("s_add_u32", s_tmp, s_tmp2, hex(j * 1024))
        k("s_mov_b32", "m0", s_tmp)
        k("buffer_load_dwordx4", vol, srdF, s_tmp, mods="offen lds")
    qf = k.v(4, 4)
    k("s_lshl_b32", s_tmp, s_h, 6)
    k("s_add_u32", s_tmp, s_tmp, s_qt)
    k("s_lshl_b32", s_tmp, s_tmp, 10)
    k("buffer_load_dwordx4", qf, vol, srdQ, s_tmp, mods="offen")
    s_c = k.s(1); s_nc = k.s(1)
    k("s_mov_b32", s_c, f2hex(CSB))
    k("s_mov_b32", s_nc, f2hex(-CSB))
    vva = k.v(1)
    k("v_lshlrev_b32", vva, 8, vg)
    k("v_lshlrev_b32", vt1, 4, vi)
    k("v_add_u32", vva, vva, vt1)
    k("v_add_u32", vva, 65536, vva)
    vka = k.v(1)
    k("v_mov_b32", vka, vol)
    NB = 4
    kf = k.v(4 * NB, 4)
    vf = k.v(8 * NB, 4)
    k("v_cmp_eq_u32", "vcc", 16, vi)
    k("s_nop", 1)
    k("v_cndmask_b32", vt1, 0, "0x3f803f80", "vcc", c="invalid", mods="")
    k.lines.pop()
    vone = k.v(1)
    k("v_mov_b32", vone, "0x3f803f80")
    k("v_cndmask_b32", vt1, 0, vone, "vcc")
    for r in range(8 * NB):
        k("v_mov_b32", vf[r], vt1)
    sxm = k.s(2)
    k("s_mov_b32", sxm[0], "0x0000ffff")
    k("s_mov_b32", sxm[1], "0x0000ffff")
    Sx = k.v(16 * NB, 4)
    P = k.v(8 * NB, 4)
    O = k.v(16, 4)
    m = k.v(1); t0 = k.v(1); t1 = k.v(1); alpha = k.v(1); nmc = k.v(1)
    k("v_mov_b32", m, "0xff800000")
    for r in range(16):
        k("v_mov_b32", O[r], 0)
    s_j = k.s(1)
    k("s_mov_b32", s_j, 0)
    k("s_waitcnt", "vmcnt(0)")
    k("s_barrier")
    loop = name + "_loop"
    k.label(loop)
    for t in range(NB):
        k("ds_read_b128", kf[4 * t:4 * t + 4], vka, mods=f"offset:{t * 1024}")
    k("s_mov_b64", "exec", sxm)
    for t in range(NB):
        for tp in range(2):
            k("ds_read_b128", vf[8 * t + 4 * tp:8 * t + 4 * tp + 4], vva, mods=f"offset:{t * 1024 + tp * 512}")
    k("s_mov_b64", "exec", -1)
    k("v_add_u32", vka, NB * 1024, vka)
    k("v_add_u32", vva, NB * 1024, vva)
    k("s_waitcnt", "lgkmcnt(8)")
    for t in range(NB):
        k("v_mfma_f32_32x32x16_bf16", Sx[16 * t:16 * t + 16], kf[4 * t:4 * t + 4], qf, 0)
    k("s_nop", 7)
    k("s_nop", 7)
    n = 16 * NB
    k("v_max3_f32", t0, Sx[0], Sx[1], Sx[2])
    for r in range(3, n - 1, 2):
        k("v_max3_f32", t0, t0, Sx[r], Sx[r + 1])
    k("v_max_f32", t0, t0, Sx[n - 1])
    k("v_mov_b32", t1, t0)
    k("s_nop", 1)
    k("v_permlane32_swap_b32", t0, t1)
    k("v_max_f32", t0, t0, t1)
    k("v_max_f32", t0, t0, m)
    k("v_sub_f32", alpha, m, t0)
    k("v_mul_f32", alpha, s_c, alpha)
    k("v_exp_f32", alpha, alpha)
    k("v_mov_b32", m, t0)
    k("v_mul_f32", nmc, s_nc, t0)
    for r in range(n):
        k("v_fma_f32", Sx[r], Sx[r], s_c, nmc)
    for r in range(n):
        k("v_exp_f32", Sx[r], Sx[r])
    for r in range(16):
        k("v_mul_f32", O[r], O[r], alpha)
    for q in range(n // 2):
        k("v_cvt_pk_bf16_f32", P[q], Sx[2 * q], Sx[2 * q + 1])
    k("s_waitcnt", "lgkmcnt(0)")
    k("s_nop", 0)
    for t in range(NB):
        for tp in range(2):
            k("v_mfma_f32_32x32x16_bf16", O, vf[8 * t + 4 * tp:8 * t + 4 * tp + 4],
              P[8 * t + 4 * tp:8 * t + 4 * tp + 4], O)
    k("s_add_u32", s_j, s_j, 1)
    k("s_cmp_lt_u32", s_j, 64 // NB)
    k("s_cbranch_scc1", loop)
    k("s_nop", 7)
    k("s_nop", 7)
    k("v_mov_b32", t0, O[8])
    k("v_mov_b32", t1, O[8])
    k("s_nop", 1)
    k("v_permlane32_swap_b32", t0, t1)
    k("v_rcp_f32", t0, t0)
    k("s_nop", 0)
    for r in range(8):
        k("v_mul_f32", O[r], O[r], t0)
    pk = k.v(4, 4)
    k("v_cvt_pk_bf16_f32", pk[0], O[0], O[1])
    k("v_cvt_pk_bf16_f32", pk[1], O[2], O[3])
    k("v_cvt_pk_bf16_f32", pk[2], O[4], O[5])
    k("v_cvt_pk_bf16_f32", pk[3], O[6], O[7])
    k("s_nop", 1)
    k("v_permlane32_swap_b32", pk[0], pk[2])
    k("v_permlane32_swap_b32", pk[1], pk[3])
    k("s_lshl_b32", s_tmp, s_qt, 5)
    k("s_add_u32", s_tmp, s_tmp, s_h)
    k("s_lshl_b32", s_tmp, s_tmp, 10)
    k("buffer_store_dwordx4", pk, vol, srdO, s_tmp, mods="offen")
    k.label(name + "_end")
    k("s_endpgm")
    return k
```

```python
from common import *

CHW = 8192
NR = 3


def gen_k3(name="outp_kernel", nwg=256):
    k = Kernel(name)
    k.s(4, 1)
    tid = k.v(1)
    k("s_cmp_ge_u32", "s2", nwg)
    k("s_cbranch_scc1", name + "_end")
    p_ws = k.s(2); p_wo = k.s(2); p_bwo = k.s(2); p_out = k.s(2)
    load_ptr(k, p_ws, KA_WS); load_ptr(k, p_wo, KA_WO); load_ptr(k, p_bwo, KA_BWO); load_ptr(k, p_out, KA_OUT)
    s_w = k.s(1); s_tm = k.s(1); s_tn = k.s(1); s_tmp = k.s(1); s_tmp2 = k.s(1)
    vl = k.v(1); vi = k.v(1); vg = k.v(1); vt1 = k.v(1); vt2 = k.v(1); vol = k.v(1)
    k("v_lshrrev_b32", vt1, 6, tid)
    k("v_and_b32", vl, 63, tid)
    k("v_and_b32", vi, 31, tid)
    k("v_lshrrev_b32", vg, 5, vl)
    k("v_lshlrev_b32", vol, 4, vl)
    k("s_nop", 0)
    k("v_readfirstlane_b32", s_w, vt1)
    k("s_waitcnt", "lgkmcnt(0)")
    srdX = [k.s(4), k.s(4)]; srdW = [k.s(4), k.s(4)]; srdG = k.s(4); srdOut = k.s(4)
    make_srd(k, srdX[0], p_ws, 16 * MB, add=WS_CTX)
    make_srd(k, srdX[1], p_ws, 2 * MB, add=WS_OB)
    make_srd(k, srdW[0], p_wo, HD * M * 2)
    make_srd(k, srdW[1], p_bwo, M * M * 2)
    make_srd(k, srdG, p_ws, 2 * 2048 * 4, add=WS_G)
    make_srd(k, srdOut, p_out, S * M * 2)
    k("s_and_b32", s_tn, "s2", 7)
    k("s_lshr_b32", s_tm, "s2", 3)
    s_qt = k.s(1); s_nl = k.s(1)
    k("s_lshr_b32", s_tmp, s_w, 1)
    k("s_lshl_b32", s_qt, s_tm, 1)
    k("s_add_u32", s_qt, s_qt, s_tmp)
    k("s_and_b32", s_nl, s_w, 1)
    vdma = k.v(1)
    k("v_lshrrev_b32", vt1, 3, vl)
    k("v_lshrrev_b32", vt2, 1, vt1)
    k("v_and_b32", vt2, 1, vt2)
    k("v_lshlrev_b32", vt2, 2, vt2)
    k("v_and_b32", vdma, 7, vl)
    k("v_xor_b32", vdma, vdma, vt2)
    k("v_lshlrev_b32", vdma, 4, vdma)
    k("v_lshlrev_b32", vt1, 10, vt1)
    k("v_add_u32", vdma, vdma, vt1)
    s_wb = k.s(1); s_m0 = k.s(1)
    k("s_lshl_b32", s_wb, s_w, 14)
    k("s_lshl_b32", s_tmp, s_tn, 7)
    k("s_add_u32", s_wb, s_wb, s_tmp)
    k("s_lshl_b32", s_m0, s_w, 11)
    vq = k.v(1); vr = k.v(1); vwa = k.v(1)
    k("v_lshrrev_b32", vq, 4, vl)
    k("v_and_b32", vr, 15, vl)
    k("v_lshrrev_b32", vr, 2, vr)
    k("v_lshrrev_b32", vt1, 1, vq)
    k("v_lshlrev_b32", vt1, 3, vt1)
    k("v_add_u32", vt1, vt1, vr)
    k("v_lshlrev_b32", vt1, 7, vt1)
    k("v_lshrrev_b32", vt2, 1, vr)
    k("v_xor_b32", vt2, s_nl, vt2)
    k("v_lshlrev_b32", vt2, 6, vt2)
    k("v_add_u32", vt1, vt1, vt2)
    k("v_and_b32", vt2, 1, vq)
    k("v_lshlrev_b32", vt2, 5, vt2)
    k("v_add_u32", vt1, vt1, vt2)
    k("v_and_b32", vt2, 3, vl)
    k("v_lshlrev_b32", vt2, 3, vt2)
    k("v_add_u32", vwa, vt1, vt2)
    acc = [k.v(16, 4), k.v(16, 4)]
    xf = [k.v(16, 4), k.v(16, 4)]
    wf = k.v(16, 4)
    s_j = k.s(1); s_xo = k.s(1); s_wo = k.s(1); s_buf = k.s(1); s_nbuf = k.s(1)
    vwr = k.v(1)

    def dma(seg, sbuf):
        for j in range(2):
            k("s_add_u32", s_tmp, s_wo, hex(8 * j * 1024))
            k("s_add_u32", s_tmp2, s_m0, sbuf)
            k("s_add_u32", "m0", s_tmp2, hex(j * 1024))
            k("buffer_load_dwordx4", vdma, srdW[seg], s_tmp, mods="offen lds")
        k("s_add_u32", s_wo, s_wo, 65536)

    def load_x(seg, dst):
        for s in range(4):
            k("buffer_load_dwordx4", dst[4 * s:4 * s + 4], vol, srdX[seg], s_xo, mods=f"offen offset:{s * 1024}")
        k("s_add_u32", s_xo, s_xo, 4096)

    for seg, nch in ((0, 64), (1, 8)):
        lab = f"{name}_seg{seg}"
        for r in range(16):
            k("v_mov_b32", acc[seg][r], 0)
        k("s_lshl_b32", s_xo, s_qt, 18 if seg == 0 else 15)
        k("s_mov_b32", s_wo, s_wb)
        k("s_mov_b32", s_buf, 0)
        k("s_barrier")
        dma(seg, s_buf)
        load_x(seg, xf[0])
        k("s_mov_b32", s_j, 0)
        k("v_mov_b32", vwr, vwa)
        k.label(lab)
        for half in range(2):
            k("s_waitcnt", "vmcnt(0)")
            k("s_barrier")
            k("s_xor_b32", s_nbuf, s_buf, CHW)
            k("s_add_u32", s_tmp, s_j, 1)
            k("s_cmp_ge_u32", s_tmp, nch)
            k("s_cbranch_scc1", f"{lab}_nd{half}")
            dma(seg, s_nbuf)
            load_x(seg, xf[1 - half])
            k.label(f"{lab}_nd{half}")
            for s in range(4):
                k("ds_read_b64_tr_b16", wf[4 * s:4 * s + 2], vwr, mods=f"offset:{s * 2048}")
                k("ds_read_b64_tr_b16", wf[4 * s + 2:4 * s + 4], vwr, mods=f"offset:{s * 2048 + 512}")
            k("s_waitcnt", "lgkmcnt(0)")
            for s in range(4):
                k("v_mfma_f32_32x32x16_bf16", acc[seg], wf[4 * s:4 * s + 4], xf[half][4 * s:4 * s + 4], acc[seg])
            k("v_xor_b32", vwr, CHW, vwr)
            k("s_mov_b32", s_buf, s_nbuf)
            k("s_add_u32", s_j, s_j, 1)
        k("s_cmp_lt_u32", s_j, nch)
        k("s_cbranch_scc1", lab)
    k("s_lshl_b32", s_tmp, s_qt, 7)
    k("v_lshlrev_b32", vt1, 2, vi)
    k("v_add_u32", vt1, s_tmp, vt1)
    gv = k.v(1); gn = k.v(1)
    k("buffer_load_dword", gv, vt1, srdG, 0, mods="offen")
    k("v_add_u32", vt1, 8192, vt1)
    k("buffer_load_dword", gn, vt1, srdG, 0, mods="offen")
    k("s_nop", 7)
    k("s_nop", 7)
    k("s_waitcnt", "vmcnt(0)")
    ta = k.v(1); tb = k.v(1)
    for r in range(16):
        k("v_cvt_pk_bf16_f32", ta, acc[0][r], acc[1][r])
        k("v_and_b32", tb, "0xffff0000", ta)
        k("v_lshlrev_b32", ta, 16, ta)
        k("v_mul_f32", ta, ta, gv)
        k("v_mul_f32", tb, tb, gn)
        k("v_cvt_pk_bf16_f32", ta, ta, tb)
        k("v_and_b32", tb, "0xffff0000", ta)
        k("v_lshlrev_b32", ta, 16, ta)
        k("v_add_f32", acc[0][r], ta, tb)
    vo = k.v(1)
    k("s_lshl_b32", s_tmp, s_qt, 5)
    k("v_add_u32", vo, s_tmp, vi)
    k("v_lshlrev_b32", vo, 10, vo)
    k("v_lshlrev_b32", vt1, 4, vg)
    k("v_add_u32", vo, vo, vt1)
    k("s_lshl_b32", s_tmp, s_tn, 7)
    k("s_lshl_b32", s_tmp2, s_nl, 6)
    k("s_add_u32", s_tmp, s_tmp, s_tmp2)
    pk = k.v(4, 4)
    a_ = acc[0]
    for jj in range(2):
        j0, j1 = 2 * jj, 2 * jj + 1
        k("v_cvt_pk_bf16_f32", pk[0], a_[4 * j0], a_[4 * j0 + 1])
        k("v_cvt_pk_bf16_f32", pk[1], a_[4 * j0 + 2], a_[4 * j0 + 3])
        k("v_cvt_pk_bf16_f32", pk[2], a_[4 * j1], a_[4 * j1 + 1])
        k("v_cvt_pk_bf16_f32", pk[3], a_[4 * j1 + 2], a_[4 * j1 + 3])
        k("s_nop", 1)
        k("v_permlane32_swap_b32", pk[0], pk[2])
        k("v_permlane32_swap_b32", pk[1], pk[3])
        k("buffer_store_dwordx4", pk, vo, srdOut, s_tmp, mods=f"offen offset:{jj * 32}")
        k("s_nop", 1)
    k.label(name + "_end")
    k("s_endpgm")
    return k
```

```python
from common import *
from k0_small import gen_k0
from k1_proj import gen_k1, LDS_K1
from k2a_attn import gen_k2a
from k2b_attn import gen_k2b
from k3_out import gen_k3

HEADER = open('gated_mix__compressed_kv_cla__grouped_kv_mqa__prompt.s.ref').read().split('; Override launch geometry')[0].rstrip('\n').split('\n')

def build(path):
    ks = [gen_k0(), gen_k1(), gen_k1("projb_kernel", variant="B"), gen_k2a(), gen_k2b(), gen_k3()]
    hdr = HEADER + [
        "; @launch kernel=small_kernel grid=(16,1,1) block=(256,1,1) lds=32768",
        f"; @launch kernel=proj_kernel grid=(256,1,1) block=(256,1,1) lds={LDS_K1}",
        f"; @launch kernel=projb_kernel grid=(32,1,1) block=(256,1,1) lds={LDS_K1}",
        "; @launch kernel=attna_kernel grid=(256,1,1) block=(256,1,1) lds=65536",
        "; @launch kernel=attnb_kernel grid=(256,1,1) block=(512,1,1) lds=131072",
        "; @launch kernel=outp_kernel grid=(256,1,1) block=(256,1,1) lds=32768"]
    open(path, 'w').write(build_file(hdr, ks))
    for x in ks:
        print(x.name, x.hi)

if __name__ == "__main__":
    build('out_all.s')
```

```python
import math
from common import *

CSC = float(128 ** -0.5 * math.log2(math.e))


def f2hex(f):
    import struct
    return hex(struct.unpack("<I", struct.pack("<f", f))[0])


def gen_k2a(name="attna_kernel", nwg=256, stamp=False):
    k = Kernel(name)
    k.s(4, 1)
    tid = k.v(1)
    k("s_cmp_ge_u32", "s2", nwg)
    k("s_cbranch_scc1", name + "_end")
    p_ws = k.s(2)
    load_ptr(k, p_ws, KA_WS)
    if stamp:
        st0 = k.s(8, 4)
        k("s_memrealtime", st0[0:2])
        k("s_memtime", st0[2:4])
    s_h = k.s(1); s_i = k.s(1); s_w = k.s(1)
    k("s_and_b32", s_h, "s2", 31)
    k("s_lshr_b32", s_i, "s2", 5)
    vl = k.v(1); vi = k.v(1); vg = k.v(1); vt1 = k.v(1); vt2 = k.v(1)
    k("v_lshrrev_b32", vt1, 6, tid)
    k("v_and_b32", vl, 63, tid)
    k("v_and_b32", vi, 31, tid)
    k("v_lshrrev_b32", vg, 5, vl)
    k("s_nop", 1)
    k("v_readfirstlane_b32", s_w, vt1)
    k("s_waitcnt", "lgkmcnt(0)")
    srdQ = k.s(4); srdK = k.s(4); srdV = k.s(4); srdO = k.s(4)
    make_srd(k, srdQ, p_ws, 16 * MB, add=WS_Q)
    make_srd(k, srdK, p_ws, 16 * MB, add=WS_K)
    make_srd(k, srdV, p_ws, 16 * MB, add=WS_VT)
    make_srd(k, srdO, p_ws, 16 * MB, add=WS_CTX)
    s_c = k.s(1); s_nc = k.s(1)
    k("s_mov_b32", s_c, f2hex(CSC))
    k("s_mov_b32", s_nc, f2hex(-CSC))
    s_qt = [k.s(1), k.s(1)]
    k("s_lshl_b32", s_qt[0], s_i, 2)
    k("s_add_u32", s_qt[0], s_qt[0], s_w)
    k("s_sub_u32", s_qt[1], 15, s_i)
    k("s_lshl_b32", s_qt[1], s_qt[1], 2)
    k("s_add_u32", s_qt[1], s_qt[1], s_w)
    s_nL = k.s(1); s_nH = k.s(1); s_j = k.s(1); s_tmp = k.s(1); s_tmp2 = k.s(1)
    k("s_lshl_b32", s_nL, s_i, 1)
    k("s_add_u32", s_nL, s_nL, 2)
    k("s_sub_u32", s_nH, 16, s_i)
    k("s_lshl_b32", s_nH, s_nH, 1)
    vol = k.v(1)
    k("v_lshlrev_b32", vol, 4, vl)
    qa = [k.a(32, 4), k.a(32, 4) ]
    for T in range(2):
        k("s_lshl_b32", s_tmp, s_h, 6)
        k("s_add_u32", s_tmp, s_tmp, s_qt[T])
        k("s_lshl_b32", s_tmp, s_tmp, 13)
        for ds in range(8):
            if ds == 4:
                k("s_add_u32", s_tmp, s_tmp, 4096)
            k("buffer_load_dwordx4", qa[T][4 * ds:4 * ds + 4], vol, srdQ, s_tmp, mods=f"offen offset:{(ds % 4) * 1024}")
    s_ko = k.s(1); s_vo = k.s(1); s_lb = k.s(1); s_m0k = k.s(1); s_m0v = k.s(1)
    k("s_lshl_b32", s_ko, s_h, 19)
    k("s_lshl_b32", s_tmp, s_w, 12)
    k("s_add_u32", s_ko, s_ko, s_tmp)
    k("s_lshl_b32", s_vo, s_h, 2)
    k("s_add_u32", s_vo, s_vo, s_w)
    k("s_lshl_b32", s_vo, s_vo, 17)
    k("s_lshl_b32", s_m0k, s_w, 12)
    k("s_lshl_b32", s_m0v, s_w, 12)
    k("s_add_u32", s_m0v, s_m0v, 16384)

    def dma_block():
        for d in range(4):
            k("s_add_u32", s_tmp, s_ko, hex(d * 1024))
            k("s_add_u32", s_tmp2, s_m0k, s_lb)
            k("s_add_u32", "m0", s_tmp2, hex(d * 1024))
            k("buffer_load_dwordx4", vol, srdK, s_tmp, mods="offen lds")
        for d in range(4):
            k("s_add_u32", s_tmp, s_vo, hex(d * 1024))
            k("s_add_u32", s_tmp2, s_m0v, s_lb)
            k("s_add_u32", "m0", s_tmp2, hex(d * 1024))
            k("buffer_load_dwordx4", vol, srdV, s_tmp, mods="offen lds")
        k("s_add_u32", s_ko, s_ko, 16384)
        k("s_add_u32", s_vo, s_vo, 4096)

    vka = k.v(1); vva = k.v(1)
    k("v_and_b32", vt1, 4, vi)
    k("v_lshlrev_b32", vt1, 1, vt1)
    k("v_and_b32", vt2, 8, vi)
    k("v_lshrrev_b32", vt2, 1, vt2)
    k("v_or_b32", vt1, vt1, vt2)
    k("v_and_b32", vt2, 0x13, vi)
    k("v_or_b32", vt1, vt1, vt2)
    k("v_lshlrev_b32", vt2, 5, vg)
    k("v_add_u32", vt1, vt1, vt2)
    k("v_lshlrev_b32", vka, 4, vt1)
    k("v_add_u32", vva, 16384, vol)
    vmb = k.v(1)
    k("v_lshlrev_b32", vt1, 3, vg)
    k("v_sub_u32", vmb, vi, vt1)
    ka = k.a(64, 4); va = k.a(64, 4)
    O = [k.v(64, 4), k.v(64, 4)]
    Sx = [k.v(32, 4), k.v(32, 4)]
    P = [k.v(16, 4), k.v(16, 4)]
    m = [k.v(1), k.v(1)]; lsum = [k.v(1), k.v(1)]
    t0 = k.v(1); t1 = k.v(1); alpha = k.v(1); nmc = k.v(1); vD = k.v(1); vninf = k.v(1)
    s_thr = k.s(1); s_dm = k.s(1)
    k("s_mov_b32", s_thr, f2hex(8.0 / CSC))
    k("v_mov_b32", vninf, "0xff800000")
    for T in range(2):
        k("v_mov_b32", m[T], "0xff800000")
        k("v_mov_b32", lsum[T], 0)
        for r in range(64):
            k("v_mov_b32", O[T][r], 0)
    k("s_mov_b32", s_lb, 0)
    dma_block()
    k("s_mov_b32", s_j, 0)
    sch = Sched()

    def run(mf, drain=True):
        n = len(mf)
        for idx, f in enumerate(mf):
            f()
            sch.pump_rate(n - idx - 1 if drain else max(n - idx - 1, 1) * 2)
        if drain:
            sch.drain()

    def qk(T):
        out = []
        for kt in range(2):
            s_ = Sx[T][16 * kt:16 * kt + 16]
            for ds in range(8):
                out.append(lambda kt=kt, ds=ds, s_=s_: k(
                    "v_mfma_f32_32x32x16_bf16", s_, ka[(kt * 8 + ds) * 4:(kt * 8 + ds) * 4 + 4],
                    qa[T][4 * ds:4 * ds + 4], 0 if ds == 0 else s_))
        return out

    def pv(T):
        out = []
        for ks in range(4):
            for dt in range(4):
                out.append(lambda ks=ks, dt=dt: k(
                    "v_mfma_f32_32x32x16_bf16", O[T][16 * dt:16 * dt + 16],
                    va[(dt * 4 + ks) * 4:(dt * 4 + ks) * 4 + 4], P[T][4 * ks:4 * ks + 4],
                    O[T][16 * dt:16 * dt + 16]))
        return out

    def mask(T):
        lab = k.newlabel("nm")
        k("s_lshl_b32", s_tmp, s_j, 1)
        k("s_add_u32", s_tmp, s_tmp, 1)
        k("s_cmp_lt_u32", s_tmp, s_qt[T])
        k("s_cbranch_scc1", lab)
        k("s_lshl_b32", s_tmp, s_qt[T], 5)
        k("s_lshl_b32", s_tmp2, s_j, 6)
        k("s_sub_u32", s_tmp, s_tmp, s_tmp2)
        k("v_add_u32", vD, s_tmp, vmb)
        for kt in range(2):
            for r in range(16):
                cst = 32 * kt + 16 * (r >> 3) + (r & 7)
                k("v_cmp_gt_i32", "vcc", cst, vD)
                k("s_nop", 1)
                k("v_cndmask_b32", Sx[T][16 * kt + r], Sx[T][16 * kt + r], vninf, "vcc")
        k.label(lab)

    def sm_head(T):
        S_ = Sx[T]
        mx = [t0, t1, alpha, vD]
        for c in range(4):
            k("v_max3_f32", mx[c], S_[8 * c], S_[8 * c + 1], S_[8 * c + 2])
        for c in range(4):
            k("v_max3_f32", mx[c], mx[c], S_[8 * c + 3], S_[8 * c + 4])
        for c in range(4):
            k("v_max3_f32", mx[c], mx[c], S_[8 * c + 5], S_[8 * c + 6])
        for c in range(4):
            k("v_max_f32", mx[c], mx[c], S_[8 * c + 7])
        k("v_max3_f32", t0, t0, t1, alpha)
        k("v_max_f32", t0, t0, vD)
        k("v_mov_b32", t1, t0)
        k("s_nop", 1)
        k("v_permlane32_swap_b32", t0, t1)
        k("v_max_f32", t0, t0, t1)
        k("v_sub_f32", t1, t0, m[T])
        k("v_cmp_lt_f32", "vcc", s_thr, t1)
        lab = k.newlabel("nr")
        k("s_nop", 1)
        k("s_cbranch_vccz", lab)
        k("v_max_f32", t0, t0, m[T])
        k("v_sub_f32", alpha, m[T], t0)
        k("v_mul_f32", alpha, s_c, alpha)
        k("v_exp_f32", alpha, alpha)
        k("v_mov_b32", m[T], t0)
        k("v_mul_f32", lsum[T], lsum[T], alpha)
        for r in range(64):
            k("v_mul_f32", O[T][r], O[T][r], alpha)
        k.label(lab)
        k("v_mul_f32", nmc, s_nc, m[T])

    def sm_body(T):
        S_ = Sx[T]
        part = [t0, t1, alpha, vD]
        for b in range(4):
            for r in range(8 * b, 8 * b + 8):
                sch.add(lambda r=r: k("v_fma_f32", S_[r], S_[r], s_c, nmc))
            for r in range(8 * b, 8 * b + 8):
                sch.add(lambda r=r: k("v_exp_f32", S_[r], S_[r]))
        for c in range(4):
            sch.add(lambda c=c: k("v_add_f32", part[c], S_[c], S_[c + 4]))
        for r in range(8, 32):
            sch.add(lambda r=r: k("v_add_f32", part[r % 4], part[r % 4], S_[r]))
        sch.add(lambda: k("v_add_f32", t0, t0, t1))
        sch.add(lambda: k("v_add_f32", alpha, alpha, vD))
        sch.add(lambda: k("v_add_f32", lsum[T], lsum[T], t0))
        sch.add(lambda: k("v_add_f32", lsum[T], lsum[T], alpha))
        for q in range(16):
            sch.add(lambda q=q: k("v_cvt_pk_bf16_f32", P[T][q], S_[2 * q], S_[2 * q + 1]))

    loop = name + "_loop"
    skipL = name + "_skipL"
    k.label(loop)
    lg = Tracker(k, "lgkmcnt", 15)
    k("s_waitcnt", "vmcnt(0)")
    k("s_barrier")

    def rd(dst, addr, f, tag):
        def g():
            k("ds_read_b128", dst[4 * f:4 * f + 4], addr, mods=f"offset:{f * 1024}")
            lg.issue(tag)
        return g
    for f in range(4):
        rd(ka, vka, f, ("k", f))()
    for f in range(4, 16):
        sch.add(rd(ka, vka, f, ("k", f)), prio=True)
    k("s_xor_b32", s_lb, s_lb, 32768)
    k("s_add_u32", s_tmp, s_j, 1)
    k("s_cmp_lt_u32", s_tmp, s_nH)
    k("s_cselect_b32", s_dm, 1, 0)

    def dma_piece(d, isv):
        def g():
            lab = k.newlabel("nd")
            k("s_cmp_eq_u32", s_dm, 0)
            k("s_cbranch_scc1", lab)
            k("s_add_u32", s_tmp, s_vo if isv else s_ko, hex(d * 1024))
            k("s_add_u32", s_tmp2, s_m0v if isv else s_m0k, s_lb)
            k("s_add_u32", "m0", s_tmp2, hex(d * 1024))
            k("buffer_load_dwordx4", vol, srdV if isv else srdK, s_tmp, mods="offen lds")
            k.label(lab)
        return g
    for f in range(16):
        sch.add(rd(va, vva, f, ("v", f)))
    for d in range(4):
        sch.add(dma_piece(d, False))
    for d in range(4):
        sch.add(dma_piece(d, True))

    def adv():
        k("s_add_u32", s_ko, s_ko, 16384)
        k("s_add_u32", s_vo, s_vo, 4096)
        k("v_xor_b32", vka, 32768, vka)
        k("v_xor_b32", vva, 32768, vva)
    sch.add(adv)

    def qk_w(T):
        out = []
        for idx, f in enumerate(qk(T)):
            def g(idx=idx, f=f):
                lg.wait(("k", idx))
                f()
            out.append(g)
        return out

    def pv_w(T):
        out = []
        for idx, f in enumerate(pv(T)):
            ks_, dt_ = divmod(idx, 4)
            def g(f=f, fr=dt_ * 4 + ks_):
                lg.wait(("v", fr))
                f()
            out.append(g)
        return out
    snap = (list(lg.ops), lg.done)
    q_hi, q_lo = list(sch.hi), list(sch.lo)
    k("s_cmp_ge_u32", s_j, s_nL)
    k("s_cbranch_scc1", skipL)
    run(qk_w(0))
    mq = qk(1)
    for f in mq[:4]:
        f()
    mask(0)
    sm_head(0)
    sm_body(0)
    run(mq[4:])
    k("s_nop", 1)
    mp = pv_w(0)
    for f in mp[:2]:
        f()
    mask(1)
    sm_head(1)
    sm_body(1)
    run(mp[2:])
    k("s_nop", 1)
    run(pv(1))
    k("s_branch", name + "_next")
    k.label(skipL)
    lg.ops, lg.done = list(snap[0]), snap[1]
    sch.hi.extend(q_hi); sch.lo.extend(q_lo)
    run(qk_w(1))
    k("s_nop", 7)
    k("s_nop", 3)
    mask(1)
    sm_head(1)
    sm_body(1)
    sch.drain()
    k("s_nop", 1)
    run(pv_w(1))
    k.label(name + "_next")
    k("s_add_u32", s_j, s_j, 1)
    k("s_cmp_lt_u32", s_j, s_nH)
    k("s_cbranch_scc1", loop)
    k("s_nop", 7)
    k("s_nop", 7)
    pk = k.v(4, 4)
    for T in range(2):
        k("v_mov_b32", t0, lsum[T])
        k("s_nop", 1)
        k("v_permlane32_swap_b32", lsum[T], t0)
        k("v_add_f32", t0, t0, lsum[T])
        k("v_rcp_f32", t0, t0)
        k("s_nop", 0)
        for r in range(64):
            k("v_mul_f32", O[T][r], O[T][r], t0)
        k("s_lshl_b32", s_tmp, s_qt[T], 8)
        k("s_lshl_b32", s_tmp2, s_h, 3)
        k("s_add_u32", s_tmp, s_tmp, s_tmp2)
        k("s_lshl_b32", s_tmp, s_tmp, 10)
        for dt in range(4):
            a_ = O[T][16 * dt:16 * dt + 16]
            for jj in range(2):
                j0, j1 = 2 * jj, 2 * jj + 1
                k("v_cvt_pk_bf16_f32", pk[0], a_[4 * j0], a_[4 * j0 + 1])
                k("v_cvt_pk_bf16_f32", pk[1], a_[4 * j0 + 2], a_[4 * j0 + 3])
                k("v_cvt_pk_bf16_f32", pk[2], a_[4 * j1], a_[4 * j1 + 1])
                k("v_cvt_pk_bf16_f32", pk[3], a_[4 * j1 + 2], a_[4 * j1 + 3])
                k("s_nop", 1)
                k("v_permlane32_swap_b32", pk[0], pk[2])
                k("v_permlane32_swap_b32", pk[1], pk[3])
                if dt == 2 and jj == 0:
                    k("s_add_u32", s_tmp, s_tmp, 4096)
                k("buffer_store_dwordx4", pk, vol, srdO, s_tmp, mods=f"offen offset:{((2 * dt + jj) % 4) * 1024}")
                k("s_nop", 1)
    if stamp:
        k("s_waitcnt", "vmcnt(0)")
        k("s_memrealtime", st0[4:6])
        k("s_memtime", st0[6:8])
        k("s_waitcnt", "lgkmcnt(0)")
        srdD2 = k.s(4)
        make_srd(k, srdD2, p_ws, 1 << 20, add=WS_PART)
        vs = O[0][0:8]
        for j in range(8):
            k("v_mov_b32", vs[j], st0[j])
        k("s_lshl_b32", "s3", "s2", 5)
        k("s_lshl_b32", s_tmp, s_w, 13)
        k("s_add_u32", "s3", "s3", s_tmp)
        k("v_mov_b32", t0, "s3")
        k("buffer_store_dwordx4", vs[0:4], t0, srdD2, 0, mods="offen")
        k("buffer_store_dwordx4", vs[4:8], t0, srdD2, 0, mods="offen offset:16")
    k.label(name + "_end")
    k("s_endpgm")
    return k


if __name__ == "__main__":
    from k1_proj import gen_k1, LDS_K1
    k1 = gen_k1()
    k2 = gen_k2a(stamp=True)
    print(k2.hi)
    hdr = [f"; @launch kernel=proj_kernel grid=(256,1,1) block=(256,1,1) lds={LDS_K1}",
           "; @launch kernel=attna_kernel grid=(256,1,1) block=(256,1,1) lds=65536"]
    open("out_k2a.s", "w").write(build_file(hdr, [k1, k2]))
```

```python
from common import *

CHW = 8192
NR = 3


def gen_k3(name="outp_kernel", nwg=256):
    k = Kernel(name)
    k.s(4, 1)
    tid = k.v(1)
    k("s_cmp_ge_u32", "s2", nwg)
    k("s_cbranch_scc1", name + "_end")
    p_ws = k.s(2); p_wo = k.s(2); p_bwo = k.s(2); p_out = k.s(2)
    load_ptr(k, p_ws, KA_WS); load_ptr(k, p_wo, KA_WO); load_ptr(k, p_bwo, KA_BWO); load_ptr(k, p_out, KA_OUT)
    s_w = k.s(1); s_tm = k.s(1); s_tn = k.s(1); s_tmp = k.s(1); s_tmp2 = k.s(1)
    vl = k.v(1); vi = k.v(1); vg = k.v(1); vt1 = k.v(1); vt2 = k.v(1); vol = k.v(1)
    k("v_lshrrev_b32", vt1, 6, tid)
    k("v_and_b32", vl, 63, tid)
    k("v_and_b32", vi, 31, tid)
    k("v_lshrrev_b32", vg, 5, vl)
    k("v_lshlrev_b32", vol, 4, vl)
    k("s_nop", 0)
    k("v_readfirstlane_b32", s_w, vt1)
    k("s_waitcnt", "lgkmcnt(0)")
    srdX = [k.s(4), k.s(4)]; srdW = [k.s(4), k.s(4)]; srdG = k.s(4); srdOut = k.s(4)
    make_srd(k, srdX[0], p_ws, 16 * MB, add=WS_CTX)
    make_srd(k, srdX[1], p_ws, 2 * MB, add=WS_OB)
    make_srd(k, srdW[0], p_wo, HD * M * 2)
    make_srd(k, srdW[1], p_bwo, M * M * 2)
    make_srd(k, srdG, p_ws, 2 * 2048 * 4, add=WS_G)
    make_srd(k, srdOut, p_out, S * M * 2)
    k("s_and_b32", s_tn, "s2", 7)
    k("s_lshr_b32", s_tm, "s2", 3)
    s_qt = k.s(1); s_nl = k.s(1)
    k("s_lshr_b32", s_tmp, s_w, 1)
    k("s_lshl_b32", s_qt, s_tm, 1)
    k("s_add_u32", s_qt, s_qt, s_tmp)
    k("s_and_b32", s_nl, s_w, 1)
    vdma = k.v(1)
    k("v_lshrrev_b32", vt1, 3, vl)
    k("v_lshrrev_b32", vt2, 1, vt1)
    k("v_and_b32", vt2, 1, vt2)
    k("v_lshlrev_b32", vt2, 2, vt2)
    k("v_and_b32", vdma, 7, vl)
    k("v_xor_b32", vdma, vdma, vt2)
    k("v_lshlrev_b32", vdma, 4, vdma)
    k("v_lshlrev_b32", vt1, 10, vt1)
    k("v_add_u32", vdma, vdma, vt1)
    s_wb = k.s(1); s_m0 = k.s(1)
    k("s_lshl_b32", s_wb, s_w, 14)
    k("s_lshl_b32", s_tmp, s_tn, 7)
    k("s_add_u32", s_wb, s_wb, s_tmp)
    k("s_lshl_b32", s_m0, s_w, 11)
    vq = k.v(1); vr = k.v(1); vwa = k.v(1)
    k("v_lshrrev_b32", vq, 4, vl)
    k("v_and_b32", vr, 15, vl)
    k("v_lshrrev_b32", vr, 2, vr)
    k("v_lshrrev_b32", vt1, 1, vq)
    k("v_lshlrev_b32", vt1, 3, vt1)
    k("v_add_u32", vt1, vt1, vr)
    k("v_lshlrev_b32", vt1, 7, vt1)
    k("v_lshrrev_b32", vt2, 1, vr)
    k("v_xor_b32", vt2, s_nl, vt2)
    k("v_lshlrev_b32", vt2, 6, vt2)
    k("v_add_u32", vt1, vt1, vt2)
    k("v_and_b32", vt2, 1, vq)
    k("v_lshlrev_b32", vt2, 5, vt2)
    k("v_add_u32", vt1, vt1, vt2)
    k("v_and_b32", vt2, 3, vl)
    k("v_lshlrev_b32", vt2, 3, vt2)
    k("v_add_u32", vwa, vt1, vt2)
    acc = [k.v(16, 4), k.v(16, 4)]
    xf = [k.v(16, 4) for _ in range(4)]
    wf = [k.v(16, 4), k.v(16, 4)]
    s_j = k.s(1); s_xo = k.s(1); s_wo = k.s(1)

    def dma(seg, buf):
        for j in range(2):
            k("s_add_u32", s_tmp, s_wo, hex(8 * j * 1024))
            k("s_add_u32", "m0", s_m0, hex(buf * CHW + j * 1024))
            k("buffer_load_dwordx4", vdma, srdW[seg], s_tmp, mods="offen lds")
        k("s_add_u32", s_wo, s_wo, 65536)

    def load_x(seg, dst):
        for s in range(4):
            k("buffer_load_dwordx4", dst[4 * s:4 * s + 4], vol, srdX[seg], s_xo, mods=f"offen offset:{s * 1024}")
        k("s_add_u32", s_xo, s_xo, 4096)

    for seg, nch in ((0, 64), (1, 8)):
        lab = f"{name}_seg{seg}"
        for r in range(16):
            k("v_mov_b32", acc[seg][r], 0)
        k("s_lshl_b32", s_xo, s_qt, 18 if seg == 0 else 15)
        k("s_mov_b32", s_wo, s_wb)
        k("s_waitcnt", "vmcnt(0)")
        k("s_barrier")
        for c in range(3):
            dma(seg, c)
            load_x(seg, xf[c])
        k("s_mov_b32", s_j, 0)
        k.label(lab)
        for u in range(4):
            k("s_waitcnt", "vmcnt(12)")
            k("s_barrier")
            dma(seg, (u + 3) % 4)
            load_x(seg, xf[(u + 3) % 4])
            w_ = wf[u % 2]
            for s in range(4):
                k("ds_read_b64_tr_b16", w_[4 * s:4 * s + 2], vwa, mods=f"offset:{u * CHW + s * 2048}")
                k("ds_read_b64_tr_b16", w_[4 * s + 2:4 * s + 4], vwa, mods=f"offset:{u * CHW + s * 2048 + 512}")
            for s in range(4):
                k("s_waitcnt", f"lgkmcnt({6 - 2 * s})")
                k("v_mfma_f32_32x32x16_bf16", acc[seg], w_[4 * s:4 * s + 4], xf[u][4 * s:4 * s + 4], acc[seg])
        k("s_add_u32", s_j, s_j, 4)
        k("s_cmp_lt_u32", s_j, nch)
        k("s_cbranch_scc1", lab)
    k("s_waitcnt", "vmcnt(0)")
    k("s_lshl_b32", s_tmp, s_qt, 7)
    k("v_lshlrev_b32", vt1, 2, vi)
    k("v_add_u32", vt1, s_tmp, vt1)
    gv = k.v(1); gn = k.v(1)
    k("buffer_load_dword", gv, vt1, srdG, 0, mods="offen")
    k("v_add_u32", vt1, 8192, vt1)
    k("buffer_load_dword", gn, vt1, srdG, 0, mods="offen")
    k("s_nop", 7)
    k("s_nop", 7)
    k("s_waitcnt", "vmcnt(0)")
    ta = k.v(1); tb = k.v(1)
    for r in range(16):
        k("v_cvt_pk_bf16_f32", ta, acc[0][r], acc[1][r])
        k("v_and_b32", tb, "0xffff0000", ta)
        k("v_lshlrev_b32", ta, 16, ta)
        k("v_mul_f32", ta, ta, gv)
        k("v_mul_f32", tb, tb, gn)
        k("v_cvt_pk_bf16_f32", ta, ta, tb)
        k("v_and_b32", tb, "0xffff0000", ta)
        k("v_lshlrev_b32", ta, 16, ta)
        k("v_add_f32", acc[0][r], ta, tb)
    vo = k.v(1)
    k("s_lshl_b32", s_tmp, s_qt, 5)
    k("v_add_u32", vo, s_tmp, vi)
    k("v_lshlrev_b32", vo, 10, vo)
    k("v_lshlrev_b32", vt1, 4, vg)
    k("v_add_u32", vo, vo, vt1)
    k("s_lshl_b32", s_tmp, s_tn, 7)
    k("s_lshl_b32", s_tmp2, s_nl, 6)
    k("s_add_u32", s_tmp, s_tmp, s_tmp2)
    pk = k.v(4, 4)
    a_ = acc[0]
    for jj in range(2):
        j0, j1 = 2 * jj, 2 * jj + 1
        k("v_cvt_pk_bf16_f32", pk[0], a_[4 * j0], a_[4 * j0 + 1])
        k("v_cvt_pk_bf16_f32", pk[1], a_[4 * j0 + 2], a_[4 * j0 + 3])
        k("v_cvt_pk_bf16_f32", pk[2], a_[4 * j1], a_[4 * j1 + 1])
        k("v_cvt_pk_bf16_f32", pk[3], a_[4 * j1 + 2], a_[4 * j1 + 3])
        k("s_nop", 1)
        k("v_permlane32_swap_b32", pk[0], pk[2])
        k("v_permlane32_swap_b32", pk[1], pk[3])
        k("buffer_store_dwordx4", pk, vo, srdOut, s_tmp, mods=f"offen offset:{jj * 32}")
        k("s_nop", 1)
    k.label(name + "_end")
    k("s_endpgm")
    return k
```

```python
from common import *
from k0_small import gen_k0
from k1_proj import gen_k1, LDS_K1
from k2a_attn import gen_k2a
from k2b_attn import gen_k2b
from k3_out import gen_k3

HEADER = open('gated_mix__compressed_kv_cla__grouped_kv_mqa__prompt.s.ref').read().split('; Override launch geometry')[0].rstrip('\n').split('\n')

def build(path):
    k0 = gen_k0("pre0")
    kb = gen_k1("projb_kernel", variant="B")
    idx = [i for i, l in enumerate(kb.lines) if "s_cbranch_scc1 projb_kernel_end" in l][0]
    kb.lines[idx] = "    s_cbranch_scc1 projb_kernel_pre0"
    endi = kb.lines.index("projb_kernel_end:")
    kb.lines = kb.lines[:endi + 2] + ["projb_kernel_pre0:", "    s_sub_u32 s2, s2, 32"] + k0.lines
    for f in "vas":
        kb.hi[f] = max(kb.hi[f], k0.hi[f])
    ks = [gen_k1(), kb, gen_k2a(), gen_k2b(), gen_k3()]
    hdr = HEADER + [
        f"; @launch kernel=proj_kernel grid=(256,1,1) block=(256,1,1) lds={LDS_K1}",
        f"; @launch kernel=projb_kernel grid=(48,1,1) block=(256,1,1) lds={LDS_K1}",
        "; @launch kernel=attna_kernel grid=(256,1,1) block=(256,1,1) lds=65536",
        "; @launch kernel=attnb_kernel grid=(256,1,1) block=(512,1,1) lds=131072",
        "; @launch kernel=outp_kernel grid=(256,1,1) block=(256,1,1) lds=32768"]
    open(path, 'w').write(build_file(hdr, ks))
    for x in ks:
        print(x.name, x.hi)

if __name__ == "__main__":
    build('out_all.s')
```
